```python
import torch

def _softmax(x, axis=-1):
    return torch.softmax(x, dim=axis)
def _gelu(x):
    return torch.nn.functional.gelu(x, approximate="tanh")
def _silu(x):
    return torch.nn.functional.silu(x)
def _sigmoid(x):
    return torch.sigmoid(x)
def _layernorm(x, axis=-1, eps=1e-5):
    m = x.mean(dim=axis, keepdim=True)
    v = x.var(dim=axis, keepdim=True, unbiased=False)
    return (x - m) / torch.sqrt(v + eps)
def _scatter_add(tgt, idx, src, axis=0):
    return tgt.clone().index_add_(axis, idx, src)
def _segment_sum(src, seg, n):
    out = torch.zeros((n,) + src.shape[1:], dtype=src.dtype)
    return out.index_add_(0, seg, src)
def _pad(x, pw):
    flat = tuple(v for pair in reversed(pw) for v in pair)
    return torch.nn.functional.pad(x, flat)

kernel_name = 'parallel_sum__gqa_block_cached__mixer_channel_mlp__decode'

def setup_inputs():

    _w = (lambda a: (lambda t: t.to(torch.bfloat16) if t.is_floating_point() else t)(torch.as_tensor(a)))
    def _A_setup():
        B, Sq, D = 1, 1, 640
        Hq, Hkv, Sk, Dh = 32, 32, 16384, 128
        assert Hq % Hkv == 0, (Hq, Hkv)
        return {
            "x": _w((lambda *s: torch.randn(*s, dtype=torch.bfloat16) * 0.05)(B, Sq, D)),
            "k_cache": _w((lambda *s: torch.randn(*s, dtype=torch.bfloat16) * 3.2)(B, Hkv, Sk, Dh)),
            "v_cache": _w((lambda *s: torch.randn(*s, dtype=torch.bfloat16) * 0.4)(B, Hkv, Sk, Dh)),
            "wq": _w((lambda *s: torch.randn(*s, dtype=torch.bfloat16) * 3.2)(D, Hq * Dh) * (D ** -0.5)),
            "wo": _w((lambda *s: torch.randn(*s, dtype=torch.bfloat16) * 0.4)(Hq * Dh, D) * ((Hq * Dh) ** -0.5)),
        }
    _A_in = _A_setup()

    def _B_setup():
        B, S, D, F = 1, 1, 640, 1728
        return {
            "x": _w((lambda *s: torch.randn(*s, dtype=torch.bfloat16) * 0.05)(B, S, D)),
            "w1": _w((lambda *s: torch.randn(*s, dtype=torch.bfloat16) * 3.2)(D, F) * (D ** -0.5)),
            "b1": _w((lambda *s: torch.randn(*s, dtype=torch.bfloat16) * 0.8)(F)),
            "w2": _w((lambda *s: torch.randn(*s, dtype=torch.bfloat16) * 0.1)(F, D) * (F ** -0.5)),
            "b2": _w((lambda *s: torch.randn(*s, dtype=torch.bfloat16) * 0.1)(D)),
        }
    _B_in = _B_setup()

    return {
        "A_x": _A_in["x"],
        "A_k_cache": _A_in["k_cache"],
        "A_v_cache": _A_in["v_cache"],
        "A_wq": _A_in["wq"],
        "A_wo": _A_in["wo"],
        "B_x": _B_in["x"],
        "B_w1": _B_in["w1"],
        "B_b1": _B_in["b1"],
        "B_w2": _B_in["w2"],
        "B_b2": _B_in["b2"],
    }

def reference(A_x, A_k_cache, A_v_cache, A_wq, A_wo, B_x, B_w1, B_b1, B_w2, B_b2):
    def _A_ref(x, k_cache, v_cache, wq, wo):
        B, Sq, D = x.shape
        Hq, Dh = 32, 128
        Hkv = k_cache.shape[1]
        rep = Hq // Hkv
        q = (lambda x, *d: x.permute(*d))((x @ wq).reshape(B, Sq, Hq, Dh), 0, 2, 1, 3)
        k = (lambda x, n, axis: torch.repeat_interleave(x, n, dim=axis))(k_cache, rep, axis=1)
        v = (lambda x, n, axis: torch.repeat_interleave(x, n, dim=axis))(v_cache, rep, axis=1)
        scores = torch.einsum("bhqd,bhkd->bhqk", q, k) * (Dh ** -0.5)
        p = _softmax(scores, axis=-1)
        o = torch.einsum("bhqk,bhkd->bhqd", p, v)
        return (lambda x, *d: x.permute(*d))(o, 0, 2, 1, 3).reshape(B, Sq, Hq * Dh) @ wo

    def _B_ref(x, w1, b1, w2, b2):
        y = _layernorm(x, axis=-1)
        h = _gelu(torch.einsum("bsd,df->bsf", y, w1) + b1)
        return torch.einsum("bsf,fd->bsd", h, w2) + b2

    x = A_x
    xn = _layernorm(x, axis=-1)
    return x + _A_ref(xn, A_k_cache, A_v_cache, A_wq, A_wo) + _B_ref(xn, B_w1, B_b1, B_w2, B_b2)
```

```python
import re

TRANS = ("v_exp_f32", "v_log_f32", "v_rcp_f32", "v_rsq_f32", "v_sqrt_f32", "v_sin_f32", "v_cos_f32")
REG_RE = re.compile(r"^([vsa])(\d+)$")
RNG_RE = re.compile(r"^([vsa])\[(\d+):(\d+)\]$")


def regs_of(tok):
    tok = tok.strip()
    m = REG_RE.match(tok)
    if m:
        return [(m.group(1), int(m.group(2)))]
    m = RNG_RE.match(tok)
    if m:
        return [(m.group(1), i) for i in range(int(m.group(2)), int(m.group(3)) + 1)]
    if tok == "vcc":
        return [("s", "vcc")]
    if tok == "exec":
        return [("s", "exec")]
    return []


class Ins:
    def __init__(self, text):
        self.text = text
        body = text.split(";")[0].strip()
        self.body = body
        parts = body.split(None, 1)
        self.op = parts[0]
        rest = parts[1] if len(parts) > 1 else ""
        ops = []
        depth = 0
        cur = ""
        for ch in rest:
            if ch == "[":
                depth += 1
            if ch == "]":
                depth -= 1
            if ch == "," and depth == 0:
                ops.append(cur.strip())
                cur = ""
            else:
                cur += ch
        if cur.strip():
            ops.append(cur.strip())
        self.mods = ""
        if ops:
            last = ops[-1].split(None, 1)
            ops[-1] = last[0]
            if len(last) > 1:
                self.mods = last[1]
        self.ops = ops
        op = self.op
        self.is_mfma = op.startswith("v_mfma")
        self.is_valu = op.startswith("v_") and not self.is_mfma
        self.is_trans = any(op.startswith(t) for t in TRANS)
        self.is_dpp = bool(re.search(r"quad_perm|row_", self.mods))
        self.is_vmem = op.startswith("buffer_") or op.startswith("global_")
        self.is_ds = op.startswith("ds_")
        self.is_permlane = op.startswith("v_permlane")
        self.is_readlane = op.startswith("v_readlane") or op.startswith("v_readfirstlane")
        self.is_branch = op.startswith("s_cbranch") or op == "s_branch"
        self.vdef = []
        self.sdef = []
        self.vuse = []
        self.suse = []
        R = [regs_of(o) for o in ops]

        def split(lst):
            v = [r for r in lst if r[0] in "va"]
            s = [r for r in lst if r[0] == "s"]
            return v, s

        def flat(l):
            return [x for y in l for x in y]

        if self.is_mfma:
            self.D = R[0]; self.A = R[1]; self.B = R[2]; self.C = R[3]
            self.vdef = R[0]
            self.vuse = R[1] + R[2] + R[3]
        elif self.is_valu:
            if self.is_permlane:
                self.vdef = R[0] + R[1]
                self.vuse = R[0] + R[1]
            else:
                dv, dsg = split(R[0])
                self.vdef = dv
                self.sdef = dsg
                uv, us = split(flat(R[1:]))
                self.vuse = uv
                self.suse = us
                if op.startswith("v_fmac") or op.startswith("v_mac") or op.startswith("v_writelane"):
                    self.vuse = self.vuse + dv
        elif self.is_vmem:
            if "_load" in op:
                self.vdef = split(R[0])[0]
                uv, us = split(flat(R[1:]))
                self.vuse = uv; self.suse = us
            elif "atomic" in op and ("sc0" in self.mods):
                self.vdef = split(R[0])[0]
                uv, us = split(flat(R[1:]))
                self.vuse = uv; self.suse = us
            else:
                uv, us = split(flat(R))
                self.vuse = uv; self.suse = us
            self.store_data = []
            if "_store" in op and ("x4" in op or "x3" in op):
                if op.startswith("buffer_"):
                    self.store_data = split(R[0])[0]
                else:
                    self.store_data = split(R[1])[0]
        elif self.is_ds:
            if op.startswith("ds_read") or op.startswith("ds_bpermute") or op.startswith("ds_swizzle") or op.startswith("ds_permute"):
                self.vdef = split(R[0])[0]
                self.vuse = split(flat(R[1:]))[0]
            else:
                self.vuse = split(flat(R))[0]

    def states(self):
        if self.op == "s_nop":
            return int(self.ops[0]) + 1
        return 1


def need(p, c):
    n = 0
    pv = set(p.vdef); ps = set(p.sdef)
    cu = set(c.vuse); cs = set(c.suse); cd = set(c.vdef)
    if p.is_valu:
        if ps & cs:
            if c.is_vmem:
                n = max(n, 5)
            elif c.is_readlane or c.op.startswith("v_writelane"):
                n = max(n, 4)
            elif c.is_valu or c.is_mfma:
                n = max(n, 2)
        if pv & cu:
            if c.is_dpp:
                n = max(n, 2)
            if c.is_readlane:
                n = max(n, 1)
            if c.is_permlane:
                n = max(n, 2)
            if c.is_mfma:
                n = max(n, 2)
            if p.is_trans:
                n = max(n, 1)
    if p.is_vmem and getattr(p, "store_data", None):
        if set(p.store_data) & cd:
            n = max(n, 2)
    if p.is_mfma:
        D = set(p.D)
        if c.is_mfma:
            if D & set(c.C):
                if p.D == c.C:
                    pass
                else:
                    n = max(n, 6)
            if D & (set(c.A) | set(c.B)):
                n = max(n, 8)
            if (D & set(c.D)) and p.D != c.C:
                n = max(n, 8)
        else:
            if D & (cu | cd):
                n = max(n, 8)
            if c.is_valu and (set(p.C) & cd):
                n = max(n, 3)
    return n


MAXW = 9


def fix(lines):
    items = []
    for ln in lines:
        t = ln.strip()
        if not t or t.startswith(";") or t.startswith(".") or t.startswith("//"):
            items.append(("raw", ln))
        elif re.match(r"^[A-Za-z_][\w.$]*:$", t):
            items.append(("label", t[:-1]))
        else:
            items.append(("ins", Ins(t)))
    inserted = 0
    i = 0

    def label_pos():
        return {it[1]: k for k, it in enumerate(items) if it[0] == "label"}

    def branches_to():
        d = {}
        for k, it in enumerate(items):
            if it[0] == "ins" and it[1].is_branch:
                d.setdefault(it[1].ops[0], []).append(k)
        return d

    while i < len(items):
        it = items[i]
        if it[0] != "ins":
            i += 1
            continue
        c = it[1]
        if not (c.is_valu or c.is_mfma or c.is_vmem or c.is_ds):
            i += 1
            continue
        br = branches_to()
        deficit = 0
        stack = [(i - 1, 0)]
        seen = {}
        while stack:
            k, acc = stack.pop()
            while k >= 0 and acc < MAXW:
                key = k
                if key in seen and seen[key] <= acc:
                    break
                seen[key] = acc
                x = items[k]
                if x[0] == "label":
                    for b in br.get(x[1], []):
                        stack.append((b, acc))
                    k -= 1
                    kk = k
                    while kk >= 0 and items[kk][0] != "ins" and items[kk][0] != "label":
                        kk -= 1
                    if kk >= 0 and items[kk][0] == "ins" and items[kk][1].op in ("s_branch", "s_endpgm"):
                        break
                    continue
                if x[0] == "raw":
                    k -= 1
                    continue
                p = x[1]
                n = need(p, c)
                if n > acc:
                    deficit = max(deficit, n - acc)
                acc += p.states()
                k -= 1
        if deficit > 0:
            items.insert(i, ("ins", Ins("s_nop %d" % (deficit - 1))))
            inserted += 1
            i += 1
        i += 1
    out = []
    for it in items:
        if it[0] == "label":
            out.append(it[1] + ":")
        elif it[0] == "raw":
            out.append(it[1])
        else:
            out.append("  " + it[1].text)
    return out, inserted
```

```python
import sys, struct, os
sys.path.insert(0, os.path.dirname(os.path.abspath(__file__)))
import hz

NAME = "parallel_sum__gqa_block_cached__mixer_channel_mlp__decode_kernel"

WS_SIZE = 0x200000
R_OFF = 0x0
QP_OFF = 0x10000
ZP_OFF = 0x50000
OP_OFF = 0x80000
ML_OFF = 0xC0000
AP_OFF = 0xD0000
BP_OFF = 0x100000
TS_OFF = 0x180000
TAG0 = 0x5BD1E995
TAG1 = 0x2545F491

L_XN2 = 0
L_Y2 = 2560
L_Q = 5120
L_PART = 5376
L_HH2 = 7680
L_O = 7936
L_WO = 8192
LDS_SIZE = 8192 + 20480

OOB = 0x40000000
POLL_MAX = 200000


def f2u(x):
    return struct.unpack("<I", struct.pack("<f", x))[0]


def fl(x):
    return "0x%08x" % f2u(x)


LOG2E = 1.4426950408889634
SCALE = 128 ** -0.5


def gen(NP=6, DIST=2, DS=2, kpol="nt", wpol="nt", diag=0, header=True):
    L = []
    A = L.append

    def C(s):
        L.append("; " + s)

    kp = (" " + kpol) if kpol else ""
    wp = (" " + wpol) if wpol else ""

    def srd(base, lo, hi, size):
        A(f"s_mov_b32 s{base}, s{lo}")
        A(f"s_mov_b32 s{base+1}, s{hi}")
        A(f"s_mov_b32 s{base+2}, {size}")
        A(f"s_mov_b32 s{base+3}, 0x20000")

    def vr(a, n):
        return f"v[{a}:{a+n-1}]"

    def rbf(dst, src):
        A(f"v_cvt_pk_bf16_f32 v{dst}, v{src}, v{src}")
        A(f"v_and_b32 v{dst}, 0xffff0000, v{dst}")

    def row_sum(v, steps=(8, 4, 2, 1), op="v_add_f32"):
        for s in steps:
            A(f"{op}_dpp v{v}, v{v}, v{v} row_ror:{s} row_mask:0xf bank_mask:0xf")

    def swap_add(v, t, which, op="v_add_f32"):
        A(f"v_mov_b32 v{t}, v{v}")
        A(f"v_permlane{which}_swap_b32 v{v}, v{t}")
        A(f"{op} v{v}, v{v}, v{t}")

    def wave_sum(v, t):
        row_sum(v)
        swap_add(v, t, 16)
        swap_add(v, t, 32)

    def stamp(slot, sv=252):
        if not diag:
            return
        A("s_memrealtime s[90:91]")
        A("s_waitcnt lgkmcnt(0)")
        A(f"v_mov_b32 v{sv}, s90")
        A(f"v_mov_b32 v{sv+1}, s91")
        A(f"s_lshl_b32 s92, s2, 9")
        A(f"s_lshl_b32 s93, s3, 6")
        A("s_add_u32 s92, s92, s93")
        A(f"s_add_u32 s92, s92, {TS_OFF + slot * 8}")
        A(f"v_mov_b32 v{sv+2}, 0")
        A("s_mov_b64 s[94:95], exec")
        A("s_mov_b64 exec, 1")
        A(f"buffer_store_dwordx2 v[{sv}:{sv+1}], v{sv+2}, s[36:39], s92 offen")
        A("s_mov_b64 exec, s[94:95]")

    def ln(xin, tmp):
        t0, t1, t2, t3, t4, t5 = [tmp + i for i in range(6)]
        A(f"v_add_f32 v{t0}, v{xin}, v{xin+1}")
        for i in range(2, 10):
            A(f"v_add_f32 v{t0}, v{t0}, v{xin+i}")
        wave_sum(t0, t1)
        A(f"v_mul_f32 v{t0}, {fl(1.0/640.0)}, v{t0}")
        A(f"v_sub_f32 v{t2}, v{xin}, v{t0}")
        A(f"v_mul_f32 v{t3}, v{t2}, v{t2}")
        for i in range(1, 10):
            A(f"v_sub_f32 v{t2}, v{xin+i}, v{t0}")
            A(f"v_fmac_f32 v{t3}, v{t2}, v{t2}")
        wave_sum(t3, t1)
        A(f"v_mul_f32 v{t3}, {fl(1.0/640.0)}, v{t3}")
        rbf(t3, t3)
        A(f"v_add_f32 v{t3}, {fl(1e-5)}, v{t3}")
        rbf(t3, t3)
        A(f"v_sqrt_f32 v{t3}, v{t3}")
        rbf(t0, t0)
        rbf(t3, t3)
        A(f"v_rcp_f32 v{t3}, v{t3}")
        for i in range(0, 10, 2):
            A(f"v_sub_f32 v{t1}, v{xin+i}, v{t0}")
            A(f"v_sub_f32 v{t2}, v{xin+i+1}, v{t0}")
            A(f"v_cvt_pk_bf16_f32 v{t4}, v{t1}, v{t2}")
            A(f"v_lshlrev_b32 v{t1}, 16, v{t4}")
            A(f"v_and_b32 v{t2}, 0xffff0000, v{t4}")
            A(f"v_mul_f32 v{t1}, v{t1}, v{t3}")
            A(f"v_mul_f32 v{t2}, v{t2}, v{t3}")
            A(f"v_cvt_pk_bf16_f32 v{xin+i}, v{t1}, v{t1}")
            A(f"v_cvt_pk_bf16_f32 v{xin+i+1}, v{t2}, v{t2}")

    def unpack_pairs(src, dst, n):
        for k in range(n):
            A(f"v_lshlrev_b32 v{dst+2*k}, 16, v{src+k}")
            A(f"v_and_b32 v{dst+2*k+1}, 0xffff0000, v{src+k}")

    def sel_masks(m, lane, t0, t1, eight_rows):
        A(f"v_and_b32 v{t0}, 1, v{lane}")
        A(f"v_cmp_eq_u32 vcc, 1, v{t0}")
        A(f"v_mov_b32 v{t0}, 0x0000ffff")
        A(f"v_mov_b32 v{t1}, 0xffff0000")
        A(f"v_cndmask_b32 v{t0}, v{t0}, v{t1}, vcc")
        A(f"v_and_b32 v{t1}, {15 if eight_rows else 7}, v{lane}")
        A(f"v_lshrrev_b32 v{t1}, 1, v{t1}")
        for r in range(4):
            A(f"v_cmp_eq_u32 vcc, {r}, v{t1}")
            A(f"v_cndmask_b32 v{m+r}, 0, v{t0}, vcc")

    def sel_gemv(n, vals, W, aset, masks, D, waits=None):
        for t in range(n):
            if waits and t in waits:
                A(f"s_waitcnt vmcnt({waits[t]})")
            a = aset + 4 * (t & 1)
            for r in range(4):
                A(f"v_and_b32 v{a+r}, v{vals+t}, v{masks+r}")
            c = "0" if t == 0 else vr(D, 4)
            A(f"v_mfma_f32_16x16x32_bf16 {vr(D,4)}, {vr(a,4)}, {vr(W+4*t,4)}, {c}")

    def tagcheck(acc, g, first):
        if first:
            A(f"v_xor_b32 v{acc}, s30, v{g+1}")
        else:
            A(f"v_bitop3_b32 v{acc}, v{acc}, v{g+1}, s30 bitop3:0xf6")
        A(f"v_bitop3_b32 v{acc}, v{acc}, v{g+3}, s31 bitop3:0xf6")

    def poll_branch(label):
        A(f"s_cbranch_vccz {label}_OK")
        A("s_add_u32 s80, s80, 1")
        A(f"s_cmp_lt_u32 s80, {POLL_MAX}")
        A(f"s_cbranch_scc1 {label}")
        A(f"{label}_OK:")

    def get_tags():
        A("s_waitcnt lgkmcnt(0)")
        A(f"s_add_u32 s30, s30, {TAG0}")
        A(f"s_add_u32 s31, s31, {TAG1}")

    if header:
        hdr = open("parallel_sum__gqa_block_cached__mixer_channel_mlp__decode.s.ref").read().split("\n")
        for ln_ in hdr:
            if ln_.startswith("; @launch") or ln_.startswith(".amdgcn_target"):
                break
            if ln_.startswith("; Override") or ln_.startswith("; grid="):
                continue
            L.append(ln_)
    L.append(f"; @launch grid=(256,1,1) block=(512,1,1) lds={LDS_SIZE}")
    L.append('.amdgcn_target "amdgcn-amd-amdhsa--gfx950"')
    L.append(".text")
    L.append(f".globl {NAME}")
    L.append(".p2align 8")
    L.append(f".type {NAME},@function")
    L.append(f"{NAME}:")

    C("256 workgroups x 8 waves. waves 0..2 helpers, wave 3 unused, waves 4..7 stream K/V")
    A("s_cmp_ge_u32 s2, 256")
    A("s_cbranch_scc1 L_END")
    A("s_load_dwordx16 s[4:19], s[0:1], 0")
    A("s_load_dwordx8 s[20:27], s[0:1], 64")
    A("s_load_dwordx2 s[28:29], s[0:1], 96")
    A("v_lshrrev_b32 v1, 6, v0")
    A("v_and_b32 v0, 63, v0")
    A("v_readfirstlane_b32 s3, v1")
    A("s_lshr_b32 s32, s2, 3")
    A("s_and_b32 s33, s2, 7")
    A("s_lshl_b32 s34, s33, 2")
    A("s_lshr_b32 s35, s2, 6")
    A("s_add_u32 s34, s34, s35")
    A("s_and_b32 s35, s32, 7")
    A("s_waitcnt lgkmcnt(0)")
    A("s_cmp_eq_u32 s3, 3")
    A("s_cbranch_scc1 L_END")
    srd(36, 28, 29, WS_SIZE)
    A("s_cmp_ge_u32 s3, 4")
    A("s_cbranch_scc1 L_STREAM")
    A(f"s_load_dwordx2 s[30:31], s[28:29], {R_OFF}")
    A("s_mov_b32 s80, 0")
    A("s_cmp_eq_u32 s3, 1")
    A("s_cbranch_scc1 L_H1")
    A("s_cmp_eq_u32 s3, 2")
    A("s_cbranch_scc1 L_H2")

    C("---- H0 ----")
    X = 10
    XF = 16
    T = 26
    MK = 32
    AS = 36
    D = 44
    VAL = 48
    G = 68
    W = 100
    srd(40, 4, 5, 1280)
    srd(44, 10, 11, 640 * 8192)
    A("v_lshlrev_b32 v2, 2, v0")
    for k in range(5):
        A(f"buffer_load_dword v{X+k}, v2, s[40:43], 0 offen offset:{256*k}")
    A("v_lshrrev_b32 v4, 4, v0")
    A("v_and_b32 v5, 15, v0")
    A(f"v_mul_u32_u24 v3, {20*8192}, v4")
    A("v_lshl_add_u32 v3, v5, 4, v3")
    A(f"s_mul_i32 s56, s35, {80*8192}")
    A("s_lshl_b32 s57, s34, 8")
    A("s_add_u32 s56, s56, s57")
    for t in range(20):
        A(f"buffer_load_dwordx4 {vr(W+4*t,4)}, v3, s[44:47], s56 offen{wp}")
        if t < 19:
            A("s_add_u32 s56, s56, 8192")
    A("s_barrier")
    stamp(0)
    sel_masks(MK, 0, T, T + 1, True)
    A("v_lshlrev_b32 v6, 3, v0")
    A(f"v_mul_u32_u24 v7, 80, v4")
    A(f"s_mul_i32 s57, s35, 320")
    A("v_add_u32 v7, s57, v7")
    A("s_waitcnt vmcnt(20)")
    unpack_pairs(X, XF, 5)
    ln(XF, T)
    for k in range(5):
        A(f"ds_write_b64 v6, {vr(XF+2*k,2)} offset:{L_XN2+512*k}")
    A("s_waitcnt lgkmcnt(0)")
    for i in range(5):
        A(f"ds_read_b128 {vr(VAL+4*i,4)}, v7 offset:{L_XN2+16*i}")
    get_tags()
    stamp(1)
    sel_gemv(20, VAL, W, AS, MK, D, waits={0: 15, 5: 10, 10: 5, 15: 0})
    A("v_lshlrev_b32 v8, 6, v5")
    A("v_lshl_add_u32 v8, v4, 5, v8")
    A("s_lshl_b32 s57, s34, 3")
    A("s_add_u32 s57, s57, s35")
    A("s_lshl_b32 s57, s57, 10")
    A(f"s_add_u32 s57, s57, {QP_OFF}")
    A(f"v_mov_b32 v{G+1}, s30")
    A(f"v_mov_b32 v{G+3}, s31")
    A(f"v_mov_b32 v{G+5}, s30")
    A(f"v_mov_b32 v{G+7}, s31")
    A(f"v_mov_b32 v{G}, v{D}")
    A(f"v_mov_b32 v{G+2}, v{D+1}")
    A(f"v_mov_b32 v{G+4}, v{D+2}")
    A(f"v_mov_b32 v{G+6}, v{D+3}")
    A("s_mov_b32 exec_hi, 0")
    A(f"buffer_store_dwordx4 {vr(G,4)}, v8, s[36:39], s57 offen sc1")
    A(f"buffer_store_dwordx4 {vr(G+4,4)}, v8, s[36:39], s57 offen offset:16 sc1")
    A("s_mov_b64 exec, -1")
    stamp(2)
    A("v_lshlrev_b32 v9, 4, v0")
    A("s_lshl_b32 s58, s32, 13")
    A(f"s_add_u32 s58, s58, {QP_OFF}")
    A("s_add_u32 s59, s58, 4096")
    A("L_H0_POLL:")
    for k in range(8):
        so = "s58" if k < 4 else "s59"
        A(f"buffer_load_dwordx4 {vr(G+4*k,4)}, v9, s[36:39], {so} offen offset:{1024*(k&3)} sc1")
    A("s_waitcnt vmcnt(0)")
    for k in range(8):
        tagcheck(T, G + 4 * k, k == 0)
    A(f"v_cmp_ne_u32 vcc, 0, v{T}")
    poll_branch("L_H0_POLL")
    A(f"v_add_f32 v{T}, v{G}, v{G+4}")
    A(f"v_add_f32 v{T+1}, v{G+2}, v{G+6}")
    for k in range(2, 8):
        A(f"v_add_f32 v{T}, v{T}, v{G+4*k}")
        A(f"v_add_f32 v{T+1}, v{T+1}, v{G+4*k+2}")
    A(f"v_cvt_pk_bf16_f32 v{T}, v{T}, v{T+1}")
    A("v_lshlrev_b32 v6, 2, v0")
    A(f"ds_write_b32 v6, v{T} offset:{L_Q}")
    A("s_waitcnt lgkmcnt(0)")
    stamp(3)
    A("s_barrier")
    A("s_endpgm")

    C("---- H1 ----")
    A("L_H1:")
    A("s_barrier")
    get_tags()
    A("s_barrier")
    A("s_cmp_ge_u32 s34, 27")
    A("s_cbranch_scc1 L_FIN")
    W1 = 100
    W2 = 140
    B1 = 15
    srd(40, 4, 5, 1280)
    srd(44, 16, 17, 640 * 3456)
    srd(48, 20, 21, 1728 * 1280)
    srd(52, 18, 19, 3456)
    A("v_lshlrev_b32 v2, 2, v0")
    for k in range(5):
        A(f"buffer_load_dword v{X+k}, v2, s[40:43], 0 offen offset:{256*k}")
    A("v_lshrrev_b32 v4, 4, v0")
    A("v_and_b32 v5, 15, v0")
    A("v_bfe_u32 v6, v0, 3, 1")
    A("v_and_b32 v7, 7, v0")
    A("v_mul_u32_u24 v8, 20, v4")
    A("v_mad_u32_u24 v8, v6, 10, v8")
    A(f"v_mul_u32_u24 v3, 3456, v8")
    A("v_lshl_add_u32 v3, v7, 4, v3")
    A(f"s_mul_i32 s56, s35, {80*3456}")
    A("s_lshl_b32 s57, s34, 7")
    A("s_add_u32 s56, s56, s57")
    for t in range(10):
        A(f"buffer_load_dwordx4 {vr(W1+4*t,4)}, v3, s[44:47], s56 offen{wp}")
        if t < 9:
            A("s_add_u32 s56, s56, 3456")
    A("v_and_b32 v9, 31, v0")
    A("v_lshlrev_b32 v9, 2, v9")
    A(f"buffer_load_dword v{B1}, v9, s[52:55], s57 offen")
    A(f"v_mul_u32_u24 v3, {16*1280}, v4")
    A("v_lshl_add_u32 v3, v5, 4, v3")
    A("v_cmp_gt_u32 vcc, 10, v5")
    A(f"v_mov_b32 v9, {OOB}")
    A("v_cndmask_b32 v3, v9, v3, vcc")
    A(f"s_mul_i32 s56, s34, {64*1280}")
    A("s_mul_i32 s57, s35, 160")
    A("s_add_u32 s56, s56, s57")
    for t in range(16):
        A(f"buffer_load_dwordx4 {vr(W2+4*t,4)}, v3, s[48:51], s56 offen{wp}")
        if t < 15:
            A("s_add_u32 s56, s56, 1280")
    sel_masks(MK, 0, T, T + 1, False)
    A("v_lshlrev_b32 v6, 3, v0")
    A("s_mul_i32 s57, s35, 320")
    A("v_lshlrev_b32 v8, 2, v8")
    A("v_add_u32 v8, s57, v8")
    A("s_waitcnt vmcnt(27)")
    unpack_pairs(X, XF, 5)
    ln(XF, T)
    for i in range(10):
        A(f"v_and_b32 v{XF+i}, 0xffff0000, v{XF+i}")
    ln(XF, T)
    for k in range(5):
        A(f"ds_write_b64 v6, {vr(XF+2*k,2)} offset:{L_Y2+512*k}")
    A("s_waitcnt lgkmcnt(0)")
    for i in range(5):
        A(f"ds_read_b64 {vr(VAL+2*i,2)}, v8 offset:{L_Y2+8*i}")
    A("s_waitcnt lgkmcnt(0)")
    sel_gemv(10, VAL, W1, AS, MK, D, waits={0: 17})
    A("v_add_u32 v9, 40, v0")
    A("v_lshlrev_b32 v9, 2, v9")
    for r in range(4):
        A(f"ds_bpermute_b32 v{T+r}, v9, v{D+r}")
    A("s_waitcnt lgkmcnt(0)")
    A(f"v_mov_b32 v{G+1}, s30")
    A(f"v_mov_b32 v{G+3}, s31")
    A(f"v_mov_b32 v{G+5}, s30")
    A(f"v_mov_b32 v{G+7}, s31")
    for r in range(4):
        A(f"v_add_f32 v{G+2*r}, v{D+r}, v{T+r}")
    A("v_lshlrev_b32 v8, 6, v5")
    A("v_lshl_add_u32 v8, v4, 5, v8")
    A("s_lshl_b32 s57, s34, 3")
    A("s_add_u32 s57, s57, s35")
    A("s_lshl_b32 s57, s57, 9")
    A(f"s_add_u32 s57, s57, {ZP_OFF}")
    A("s_mov_b32 s60, 0x00ff00ff")
    A("s_mov_b32 s61, 0")
    A("s_mov_b64 exec, s[60:61]")
    A(f"buffer_store_dwordx4 {vr(G,4)}, v8, s[36:39], s57 offen sc1")
    A(f"buffer_store_dwordx4 {vr(G+4,4)}, v8, s[36:39], s57 offen offset:16 sc1")
    A("s_mov_b64 exec, -1")
    A("v_lshlrev_b32 v9, 4, v0")
    A("s_lshl_b32 s58, s34, 12")
    A(f"s_add_u32 s58, s58, {ZP_OFF}")
    A("L_H1_POLL:")
    for k in range(4):
        A(f"buffer_load_dwordx4 {vr(G+4*k,4)}, v9, s[36:39], s58 offen offset:{1024*k} sc1")
    A("s_waitcnt vmcnt(0)")
    for k in range(4):
        tagcheck(T, G + 4 * k, k == 0)
    A(f"v_cmp_ne_u32 vcc, 0, v{T}")
    poll_branch("L_H1_POLL")
    A(f"v_add_f32 v{T}, v{G}, v{G+4}")
    A(f"v_add_f32 v{T+1}, v{G+2}, v{G+6}")
    for k in range(2, 4):
        A(f"v_add_f32 v{T}, v{T}, v{G+4*k}")
        A(f"v_add_f32 v{T+1}, v{T+1}, v{G+4*k+2}")
    swap_add(T, T + 2, 32)
    swap_add(T + 1, T + 2, 32)
    c1 = -2.0 * 0.7978845608028654 * LOG2E
    c2 = c1 * 0.044715
    A(f"s_mov_b32 s62, {fl(c2)}")
    for e in range(2):
        z = T + e
        rbf(z, z)
        if e == 0:
            A(f"v_lshlrev_b32 v{T+2}, 16, v{B1}")
        else:
            A(f"v_and_b32 v{T+2}, 0xffff0000, v{B1}")
        A(f"v_add_f32 v{z}, v{z}, v{T+2}")
        rbf(z, z)
        A(f"v_mul_f32 v{T+2}, v{z}, v{z}")
        A(f"v_mov_b32 v{T+3}, {fl(c1)}")
        A(f"v_fmac_f32 v{T+3}, s62, v{T+2}")
        A(f"v_mul_f32 v{T+3}, v{T+3}, v{z}")
        A(f"v_exp_f32 v{T+3}, v{T+3}")
        A(f"v_add_f32 v{T+3}, 1.0, v{T+3}")
        A(f"v_rcp_f32 v{T+3}, v{T+3}")
        A(f"v_mul_f32 v{z}, v{z}, v{T+3}")
        A(f"v_cvt_pk_bf16_f32 v{z}, v{z}, v{z}")
    A("v_and_b32 v6, 31, v0")
    A("v_lshlrev_b32 v6, 3, v6")
    A(f"ds_write_b64 v6, {vr(T,2)} offset:{L_HH2}")
    A("v_lshlrev_b32 v7, 6, v4")
    A("s_waitcnt lgkmcnt(0)")
    for i in range(4):
        A(f"ds_read_b128 {vr(VAL+4*i,4)}, v7 offset:{L_HH2+16*i}")
    sel_masks(MK, 0, T + 2, T + 3, True)
    A("s_waitcnt lgkmcnt(0)")
    sel_gemv(16, VAL, W2, AS, MK, D)
    A("v_lshrrev_b32 v6, 1, v5")
    A("v_lshlrev_b32 v6, 12, v6")
    A("v_and_b32 v7, 1, v5")
    A("v_lshl_add_u32 v6, v7, 6, v6")
    A("v_lshl_add_u32 v6, v4, 5, v6")
    A(f"s_mul_i32 s57, s35, {5*4096}")
    A("s_lshl_b32 s58, s34, 7")
    A("s_add_u32 s57, s57, s58")
    A(f"s_add_u32 s57, s57, {BP_OFF}")
    A(f"v_mov_b32 v{G+1}, s30")
    A(f"v_mov_b32 v{G+3}, s31")
    A(f"v_mov_b32 v{G+5}, s30")
    A(f"v_mov_b32 v{G+7}, s31")
    for r in range(4):
        A(f"v_mov_b32 v{G+2*r}, v{D+r}")
    A("s_mov_b32 s60, 0x03ff03ff")
    A("s_mov_b32 s61, 0")
    A("s_mov_b64 exec, s[60:61]")
    A(f"buffer_store_dwordx4 {vr(G,4)}, v6, s[36:39], s57 offen sc1")
    A(f"buffer_store_dwordx4 {vr(G+4,4)}, v6, s[36:39], s57 offen offset:16 sc1")
    A("s_mov_b64 exec, -1")
    stamp(4)
    A("s_endpgm")

    C("---- final consumer: 16 output columns ----")
    A("L_FIN:")
    XP = 10; B2P = 11; BV = 12
    srd(40, 4, 5, 1280)
    srd(44, 22, 23, 1280)
    srd(48, 24, 25, 1280)
    A("s_mul_i32 s56, s35, 5")
    A("s_add_u32 s56, s56, s34")
    A("s_sub_u32 s56, s56, 27")
    A("s_lshl_b32 s57, s56, 5")
    A("v_and_b32 v2, 7, v0")
    A("v_lshlrev_b32 v2, 2, v2")
    A(f"buffer_load_dword v{XP}, v2, s[40:43], s57 offen")
    A(f"buffer_load_dword v{B2P}, v2, s[44:47], s57 offen")
    A("v_lshlrev_b32 v9, 4, v0")
    A(f"v_mov_b32 v3, {OOB}")
    A("v_cmp_gt_u32 vcc, 24, v0")
    A("v_cndmask_b32 v3, v3, v9, vcc")
    A("s_lshl_b32 s58, s56, 12")
    A(f"s_add_u32 s59, s58, {AP_OFF}")
    A(f"s_add_u32 s58, s58, {BP_OFF}")

    def gather_sum(label, soff, partial_last):
        A(f"{label}:")
        for k in range(4):
            va = "v3" if (partial_last and k == 3) else "v9"
            A(f"buffer_load_dwordx4 {vr(G+4*k,4)}, {va}, s[36:39], {soff} offen offset:{1024*k} sc1")
        A("s_waitcnt vmcnt(0)")
        for k in range(4):
            if partial_last and k == 3:
                A("s_mov_b64 exec, 0xffffff")
            tagcheck(T, G + 4 * k, k == 0)
            if partial_last and k == 3:
                A("s_mov_b64 exec, -1")
        A(f"v_cmp_ne_u32 vcc, 0, v{T}")
        poll_branch(label)
        A(f"v_add_f32 v{T}, v{G}, v{G+4}")
        A(f"v_add_f32 v{T+1}, v{G+2}, v{G+6}")
        for k in range(2, 4):
            A(f"v_add_f32 v{T}, v{T}, v{G+4*k}")
            A(f"v_add_f32 v{T+1}, v{T+1}, v{G+4*k+2}")
        row_sum(T, steps=(8,))
        row_sum(T + 1, steps=(8,))
        swap_add(T, T + 2, 16)
        swap_add(T + 1, T + 3, 16)
        swap_add(T, T + 2, 32)
        swap_add(T + 1, T + 3, 32)

    gather_sum("L_FIN_POLLB", "s58", True)
    for e in range(2):
        rbf(T + e, T + e)
        if e == 0:
            A(f"v_lshlrev_b32 v{T+2}, 16, v{B2P}")
        else:
            A(f"v_and_b32 v{T+2}, 0xffff0000, v{B2P}")
        A(f"v_add_f32 v{T+e}, v{T+e}, v{T+2}")
        rbf(BV + e, T + e)
    A(f"v_lshlrev_b32 v14, 16, v{XP}")
    A(f"v_and_b32 v15, 0xffff0000, v{XP}")
    stamp(4)
    A("s_barrier")
    gather_sum("L_FIN_POLLA", "s59", False)
    for e in range(2):
        rbf(T + e, T + e)
        A(f"v_add_f32 v{T+e}, v{T+e}, v{14+e}")
        rbf(T + e, T + e)
        A(f"v_add_f32 v{T+e}, v{T+e}, v{BV+e}")
    A(f"v_cvt_pk_bf16_f32 v{T}, v{T}, v{T+1}")
    A("s_mov_b64 exec, 0xff")
    A(f"buffer_store_dword v{T}, v2, s[48:51], s57 offen")
    A("s_cmp_lg_u32 s56, 0")
    A("s_cbranch_scc1 L_FIN_DONE")
    A("s_mov_b64 exec, 1")
    A("v_mov_b32 v4, s30")
    A("v_mov_b32 v5, s31")
    A(f"v_mov_b32 v6, {R_OFF}")
    A("buffer_store_dwordx2 v[4:5], v6, s[36:39], 0 offen sc1")
    A("L_FIN_DONE:")
    if diag:
        A("s_mov_b64 exec, -1")
        stamp(5)
    A("s_endpgm")

    C("---- H2 ----")
    A("L_H2:")
    A("s_barrier")
    get_tags()
    A("s_barrier")
    WS_ = 100
    WB = 16
    T2 = 2
    G2 = 180
    D2 = 216
    AO = 236
    srd(40, 12, 13, 4096 * 1280)
    A(f"s_mul_i32 s56, s34, {128*1280}")
    A("s_mul_i32 s57, s35, 160")
    A("s_add_u32 s56, s56, s57")
    for k in range(20):
        A(f"v_add_u32 v2, {64*k}, v0")
        A("v_mul_u32_u24 v3, 6554, v2")
        A("v_lshrrev_b32 v3, 16, v3")
        A("v_mul_u32_u24 v4, 10, v3")
        A("v_sub_u32 v4, v2, v4")
        A("v_mul_u32_u24 v3, 1280, v3")
        A("v_lshl_add_u32 v3, v4, 4, v3")
        A(f"buffer_load_dwordx4 {vr(WS_+4*k,4)}, v3, s[40:43], s56 offen{wp}")
    A("v_lshlrev_b32 v2, 4, v0")
    for k in range(20):
        A(f"s_waitcnt vmcnt({19-k})")
        A(f"ds_write_b128 v2, {vr(WS_+4*k,4)} offset:{L_WO+1024*k}")
    A("s_waitcnt lgkmcnt(0)")
    A("v_lshrrev_b32 v4, 4, v0")
    A("v_and_b32 v5, 15, v0")
    A(f"v_mul_u32_u24 v3, {8*160}, v4")
    A("v_lshl_add_u32 v3, v5, 1, v3")
    for kk in range(4):
        for n in range(5):
            b = WB + (kk * 5 + n) * 4
            for r in range(4):
                o = L_WO + (32 * kk + 2 * r) * 160 + 32 * n
                A(f"ds_read_u16 v{b+r}, v3 offset:{o}")
                A(f"ds_read_u16 v{6+r}, v3 offset:{o+160}")
            A("s_waitcnt lgkmcnt(0)")
            for r in range(4):
                A(f"v_lshl_or_b32 v{b+r}, v{6+r}, 16, v{b+r}")
    A("v_lshlrev_b32 v2, 3, v0")
    A("v_lshlrev_b32 v3, 4, v0")
    A("v_mov_b32 v10, 0")
    A("s_lshl_b32 s57, s2, 10")
    A(f"s_add_u32 s57, s57, {OP_OFF}")
    A("s_lshl_b32 s58, s32, 7")
    A("s_lshl_b32 s59, s33, 4")
    A("s_add_u32 s58, s58, s59")
    A(f"s_add_u32 s58, s58, {ML_OFF}")
    A("s_lshl_b32 s59, s34, 13")
    A(f"s_add_u32 s59, s59, {OP_OFF}")
    A("s_add_u32 s60, s59, 4096")
    A("s_lshl_b32 s61, s34, 7")
    A(f"s_add_u32 s61, s61, {ML_OFF}")
    A("v_and_b32 v11, 7, v0")
    A("v_lshlrev_b32 v11, 4, v11")
    A("v_lshlrev_b32 v12, 4, v4")
    A("v_lshlrev_b32 v13, 2, v0")
    A("v_lshlrev_b32 v14, 12, v4")
    A("v_lshrrev_b32 v15, 1, v5")
    A("v_lshl_add_u32 v14, v15, 4, v14")
    A("v_lshlrev_b32 v15, 4, v15")
    A(f"s_mul_i32 s62, s35, {5*4096}")
    A("s_lshl_b32 s63, s34, 7")
    A("s_add_u32 s62, s62, s63")
    A(f"s_add_u32 s62, s62, {AP_OFF}")
    A("s_add_u32 s63, s62, 16384")
    stamp(4)
    A("s_barrier")
    stamp(5)
    P = G2
    for w in range(4):
        A(f"ds_read_b64 {vr(P+2*w,2)}, v2 offset:{L_PART+576*w}")
        A(f"ds_read_b64 {vr(P+8+2*w,2)}, v10 offset:{L_PART+576*w+512}")
    A("s_waitcnt lgkmcnt(0)")
    M = P + 16
    A(f"v_max3_f32 v{M}, v{P+8}, v{P+10}, v{P+12}")
    A(f"v_max_f32 v{M}, v{M}, v{P+14}")
    for w in range(4):
        A(f"v_sub_f32 v{P+8+2*w}, v{P+8+2*w}, v{M}")
        A(f"v_mul_f32 v{P+8+2*w}, {fl(LOG2E)}, v{P+8+2*w}")
        A(f"v_exp_f32 v{P+8+2*w}, v{P+8+2*w}")
    GR = P + 20
    A(f"v_mul_f32 v{GR}, v{P+8}, v{P}")
    A(f"v_mul_f32 v{GR+2}, v{P+8}, v{P+1}")
    A(f"v_mul_f32 v{GR+6}, v{P+8}, v{P+9}")
    for w in range(1, 4):
        A(f"v_fmac_f32 v{GR}, v{P+8+2*w}, v{P+2*w}")
        A(f"v_fmac_f32 v{GR+2}, v{P+8+2*w}, v{P+2*w+1}")
        A(f"v_fmac_f32 v{GR+6}, v{P+8+2*w}, v{P+9+2*w}")
    A(f"v_mov_b32 v{GR+1}, s30")
    A(f"v_mov_b32 v{GR+3}, s31")
    A(f"v_mov_b32 v{GR+4}, v{M}")
    A(f"v_mov_b32 v{GR+5}, s30")
    A(f"v_mov_b32 v{GR+7}, s31")
    A(f"buffer_store_dwordx4 {vr(GR,4)}, v3, s[36:39], s57 offen sc1")
    A("s_mov_b64 exec, 1")
    A(f"buffer_store_dwordx4 {vr(GR+4,4)}, v10, s[36:39], s58 offen sc1")
    A("s_mov_b64 exec, -1")
    stamp(6)
    ML = G2 + 32
    A("s_nop 1")
    A("L_H2_POLL:")
    for k in range(8):
        so = "s59" if k < 4 else "s60"
        A(f"buffer_load_dwordx4 {vr(G2+4*k,4)}, v3, s[36:39], {so} offen offset:{1024*(k&3)} sc1")
    A(f"buffer_load_dwordx4 {vr(ML,4)}, v11, s[36:39], s61 offen sc1")
    A("s_waitcnt vmcnt(0)")
    tagcheck(6, ML, True)
    for k in range(8):
        tagcheck(6, G2 + 4 * k, False)
    A("v_cmp_ne_u32 vcc, 0, v6")
    poll_branch("L_H2_POLL")
    stamp(7)
    A(f"v_max_f32_dpp v6, v{ML}, v{ML} row_ror:4 row_mask:0xf bank_mask:0xf")
    A("v_max_f32_dpp v6, v6, v6 row_ror:2 row_mask:0xf bank_mask:0xf")
    A("v_max_f32_dpp v6, v6, v6 row_ror:1 row_mask:0xf bank_mask:0xf")
    A(f"v_sub_f32 v6, v{ML}, v6")
    A(f"v_mul_f32 v6, {fl(LOG2E)}, v6")
    A("v_exp_f32 v6, v6")
    A(f"v_mul_f32 v7, v6, v{ML+2}")
    row_sum(7, steps=(4, 2, 1))
    A("v_rcp_f32 v7, v7")
    A("v_mul_f32 v6, v6, v7")
    A(f"v_mul_f32_dpp v8, v6, v{G2} row_newbcast:0 row_mask:0xf bank_mask:0xf")
    A(f"v_mul_f32_dpp v9, v6, v{G2+2} row_newbcast:0 row_mask:0xf bank_mask:0xf")
    for k in range(1, 8):
        A(f"v_fmac_f32_dpp v8, v6, v{G2+4*k} row_newbcast:{k} row_mask:0xf bank_mask:0xf")
        A(f"v_fmac_f32_dpp v9, v6, v{G2+4*k+2} row_newbcast:{k} row_mask:0xf bank_mask:0xf")
    A("v_cvt_pk_bf16_f32 v8, v8, v9")
    A(f"ds_write_b32 v13, v8 offset:{L_O}")
    A("s_waitcnt lgkmcnt(0)")
    for kk in range(4):
        A(f"ds_read_b128 {vr(AO+4*kk,4)}, v12 offset:{L_O+64*kk}")
    A("s_waitcnt lgkmcnt(0)")
    for kk in range(4):
        for n in range(5):
            b = WB + (kk * 5 + n) * 4
            c = "0" if kk == 0 else vr(D2 + 4 * n, 4)
            A(f"v_mfma_f32_16x16x32_bf16 {vr(D2+4*n,4)}, {vr(AO+4*kk,4)}, {vr(b,4)}, {c}")
    GA = G2
    A("v_cmp_eq_u32 s[64:65], 1, v4")
    A("v_cmp_eq_u32 s[66:67], 2, v4")
    A("v_cmp_eq_u32 s[68:69], 3, v4")
    A(f"v_mov_b32 v{GA+1}, s30")
    A(f"v_mov_b32 v{GA+3}, s31")
    A(f"v_mov_b32 v{GA+5}, s30")
    A(f"v_mov_b32 v{GA+7}, s31")
    A(f"v_cndmask_b32 v{GA}, v{D2}, v{D2+4}, s[64:65]")
    A(f"v_cndmask_b32 v{GA}, v{GA}, v{D2+8}, s[66:67]")
    A(f"v_cndmask_b32 v{GA}, v{GA}, v{D2+12}, s[68:69]")
    A(f"v_mov_b32 v{GA+4}, v{D2+16}")
    A(f"v_mov_b32_dpp v{GA+2}, v{GA} quad_perm:[1,0,3,2] row_mask:0xf bank_mask:0xf")
    A(f"v_mov_b32_dpp v{GA+6}, v{GA+4} quad_perm:[1,0,3,2] row_mask:0xf bank_mask:0xf")
    A("s_mov_b32 s70, 0x55555555")
    A("s_mov_b32 s71, 0x55555555")
    A("s_mov_b64 exec, s[70:71]")
    A(f"buffer_store_dwordx4 {vr(GA,4)}, v14, s[36:39], s62 offen sc1")
    A("s_mov_b64 exec, 0x5555")
    A(f"buffer_store_dwordx4 {vr(GA+4,4)}, v15, s[36:39], s63 offen sc1")
    if diag:
        A("s_mov_b64 exec, -1")
        stamp(3)
    A("s_endpgm")

    C("---- streamers ----")
    A("L_STREAM:")
    RB = 64
    NS = NP
    AQ = 8
    MKS = 24
    DSC = 28
    DO = 32
    PA = 36
    vS, vT, vP, vP2s, vP2, vL, vM, vT2 = 44, 45, 46, 47, 48, 49, 50, 51
    vK, vV = 2, 3
    assert RB + 32 * NS <= 256
    A("s_lshl_b32 s56, s32, 22")
    A("s_add_u32 s40, s6, s56")
    A("s_addc_u32 s41, s7, 0")
    A(f"s_mov_b32 s42, {4<<20}")
    A("s_mov_b32 s43, 0x20000")
    A("s_add_u32 s44, s8, s56")
    A("s_addc_u32 s45, s9, 0")
    A(f"s_mov_b32 s46, {4<<20}")
    A("s_mov_b32 s47, 0x20000")
    A("v_lshrrev_b32 v4, 4, v0")
    A("v_and_b32 v5, 15, v0")
    A(f"v_lshlrev_b32 v{vK}, 8, v5")
    A(f"v_lshl_add_u32 v{vK}, v4, 4, v{vK}")
    A(f"v_lshlrev_b32 v{vV}, 4, v0")
    A("s_lshl_b32 s56, s33, 19")
    A("s_sub_u32 s57, s3, 4")
    A("s_lshl_b32 s57, s57, 12")
    A("s_add_u32 s56, s56, s57")
    A(f"s_add_u32 s57, s56, {32*16384}")
    SOFF = 60

    def slot_regs(slot):
        return RB + 32 * slot

    def issue(slot):
        b = slot_regs(slot)
        A(f"s_cmp_lt_u32 s56, s57")
        A(f"s_cselect_b32 s{SOFF+slot}, s56, {OOB}")
        A("s_add_u32 s56, s56, 16384")
        for kk in range(4):
            A(f"buffer_load_dwordx4 {vr(b+4*kk,4)}, v{vK}, s[40:43], s{SOFF+slot} offen offset:{64*kk}{kp}")
        for u in range(4):
            A(f"buffer_load_dwordx4 {vr(b+16+4*u,4)}, v{vV}, s[44:47], s{SOFF+slot} offen offset:{1024*u}{kp}")

    A("s_barrier")
    stamp(0, 54)
    for k in range(min(DS, NP)):
        issue(k)
    sel_masks(MKS, 0, vT, vT2, True)
    A(f"v_mov_b32 v{vM}, 0xff800000")
    A(f"v_mov_b32 v{vL}, 0")
    for r in range(4):
        A(f"v_mov_b32 v{DO+r}, 0")
    A("v_lshlrev_b32 v6, 4, v4")
    for k in range(DS, NP):
        A(f"s_waitcnt vmcnt({8*(DS-1)})")
        issue(k)
    stamp(1, 54)
    A("s_barrier")
    for kk in range(4):
        A(f"ds_read_b128 {vr(AQ+4*kk,4)}, v6 offset:{L_Q+64*kk}")
    A("s_waitcnt lgkmcnt(0)")
    stamp(2, 54)

    uid = [0]

    def step(slot, wait, issue_slot):
        uid[0] += 1
        u = uid[0]
        b = slot_regs(slot)
        A(f"s_cmp_ge_u32 s{SOFF+slot}, {OOB}")
        A("s_cbranch_scc1 L_SDONE")
        A(f"s_waitcnt vmcnt({wait})")
        if issue_slot is not None:
            issue(issue_slot)
        for kk in range(4):
            c = "0" if kk == 0 else vr(DSC, 4)
            A(f"v_mfma_f32_16x16x32_bf16 {vr(DSC,4)}, {vr(AQ+4*kk,4)}, {vr(b+4*kk,4)}, {c}")
        rbf(vT, DSC)
        A(f"v_mul_f32 v{vT}, {fl(SCALE)}, v{vT}")
        rbf(vS, vT)
        A(f"v_cmp_gt_f32 vcc, v{vS}, v{vM}")
        A(f"s_cbranch_vccz L_NORESC_{u}")
        A(f"v_max_f32_dpp v{vT}, v{vS}, v{vS} row_ror:8 row_mask:0xf bank_mask:0xf")
        for s in (4, 2, 1):
            A(f"v_max_f32_dpp v{vT}, v{vT}, v{vT} row_ror:{s} row_mask:0xf bank_mask:0xf")
        A(f"v_max_f32 v{vT}, v{vT}, v{vM}")
        A(f"v_sub_f32 v{vT2}, v{vM}, v{vT}")
        A(f"v_mul_f32 v{vT2}, {fl(LOG2E)}, v{vT2}")
        A(f"v_exp_f32 v{vT2}, v{vT2}")
        A(f"v_mov_b32 v{vM}, v{vT}")
        A(f"v_mul_f32 v{vL}, v{vL}, v{vT2}")
        for r in range(4):
            A(f"v_mul_f32 v{DO+r}, v{DO+r}, v{vT2}")
        A(f"L_NORESC_{u}:")
        A(f"v_sub_f32 v{vT}, v{vS}, v{vM}")
        A(f"v_mul_f32 v{vT}, {fl(LOG2E)}, v{vT}")
        A(f"v_exp_f32 v{vP}, v{vT}")
        A(f"v_cvt_pk_bf16_f32 v{vP2s}, v{vP}, v{vP}")
        A(f"v_cvt_pk_bf16_f32 v{vP2}, v{vP}, v{vP}")
        A(f"v_add_f32 v{vL}, v{vL}, v{vP}")
        A(f"v_mov_b32_dpp v{vP2}, v{vP2s} row_shl:1 row_mask:0x2 bank_mask:0xf")
        A(f"v_mov_b32_dpp v{vP2}, v{vP2s} row_shl:2 row_mask:0x4 bank_mask:0xf")
        A(f"v_mov_b32_dpp v{vP2}, v{vP2s} row_shl:3 row_mask:0x8 bank_mask:0xf")

        def ands(uu):
            a = PA + 4 * (uu & 1)
            for r in range(4):
                A(f"v_and_b32_dpp v{a+r}, v{vP2}, v{MKS+r} row_newbcast:{4*uu} row_mask:0xf bank_mask:0xf")

        def pv(uu):
            a = PA + 4 * (uu & 1)
            A(f"v_mfma_f32_16x16x32_bf16 {vr(DO,4)}, {vr(a,4)}, {vr(b+16+4*uu,4)}, {vr(DO,4)}")
        ands(0); ands(1); pv(0); ands(2); pv(1); ands(3); pv(2); pv(3)

    npeel = NP - DIST - 1 if DIST < NP else 0
    RS = DIST + 1
    assert RS <= NP
    first = NP - RS
    for n in range(first):
        step(n, 8 * (NP - 1 - n), None)
    step(first, 8 * (RS - 1), None)
    A("L_SLOOP:")
    for i in range(RS):
        cons = first + (i + 1) % RS
        free = first + i % RS
        step(cons, 8 * (DIST - 1), free)
    A("s_branch L_SLOOP")

    A("L_SDONE:")
    stamp(3, 54)
    row_sum(vL)
    A("v_lshlrev_b32 v6, 5, v5")
    A("v_lshl_add_u32 v6, v4, 4, v6")
    A("s_sub_u32 s58, s3, 4")
    A("s_mul_i32 s58, s58, 576")
    A("v_add_u32 v6, s58, v6")
    A("v_mov_b32 v7, s58")
    A(f"v_mov_b32 v52, v{vM}")
    A(f"v_mov_b32 v53, v{vL}")
    A("s_mov_b32 exec_hi, 0")
    A(f"ds_write_b128 v6, {vr(DO,4)} offset:{L_PART}")
    A("s_mov_b64 exec, 1")
    A(f"ds_write_b64 v7, v[52:53] offset:{L_PART+512}")
    A("s_mov_b64 exec, -1")
    A("s_waitcnt lgkmcnt(0)")
    A("s_barrier")
    A("L_END:")
    A("s_endpgm")

    L = [x for x in L if x is not None]
    out, nins = hz.fix(L)
    out.append('.section .rodata,"a"')
    out.append(".p2align 6")
    out.append(f".amdhsa_kernel {NAME}")
    out.append("  .amdhsa_next_free_vgpr 256")
    out.append("  .amdhsa_next_free_sgpr 102")
    out.append("  .amdhsa_accum_offset 256")
    out.append("  .amdhsa_group_segment_fixed_size 0")
    out.append("  .amdhsa_kernarg_size 104")
    out.append("  .amdhsa_user_sgpr_count 2")
    out.append("  .amdhsa_user_sgpr_kernarg_segment_ptr 1")
    out.append("  .amdhsa_system_sgpr_workgroup_id_x 1")
    out.append(".end_amdhsa_kernel")
    return "\n".join(out) + "\n"


def parse_spec(spec):
    kw = {}
    if spec:
        for it in spec.split(","):
            k, v = it.split("=")
            try:
                v = int(v)
            except ValueError:
                pass
            kw[k] = v
    return kw


if __name__ == "__main__":
    spec = sys.argv[1] if len(sys.argv) > 1 else ""
    sys.stdout.write(gen(**parse_spec(spec)))
```

```python
import sys, struct, os
sys.path.insert(0, os.path.dirname(os.path.abspath(__file__)))
import hz

NAME = "parallel_sum__gqa_block_cached__mixer_channel_mlp__decode_kernel"

WS_SIZE = 0x400000
R_OFF = 0x0
QP_OFF = 0x10000
ZP_OFF = 0x50000
OP_OFF = 0x80000
ML_OFF = 0xC0000
AP_OFF = 0xD0000
BP_OFF = 0x100000
TS_OFF = 0x180000
CNT_OFF = 0x1C0000
TS2_OFF = 0x200000
TAG0 = 0x5BD1E995
TAG1 = 0x2545F491

L_XN2 = 0
L_Y2 = 2560
L_Q = 5120
L_PART = 5376
L_HH2 = 7680
L_O = 7936
L_WO = 8192
L_FLAG = 8192 + 20480
LDS_SIZE = 8192 + 20480 + 64

OOB = 0x40000000
POLL_MAX = 200000


def f2u(x):
    return struct.unpack("<I", struct.pack("<f", x))[0]


def fl(x):
    return "0x%08x" % f2u(x)


LOG2E = 1.4426950408889634
SCALE = 128 ** -0.5


def gen(NP=6, DIST=2, DS=2, kpol="nt", wpol="nt", diag=0, header=True, qmap=1, prio=0, b0late=0, NSTAT=32, apol="sc0 sc1", dumload=0, noq=0, noh=0, nocomp=0, xmaj=0, h1stop=9, h2stop=9, finoff=0, psleep=0, sprio=0, ldyn=0, hprio=0, zmap=0, finlate=0, pubwait=0):
    L = []
    A = L.append

    def C(s):
        L.append("; " + s)

    dyn = NSTAT < 32
    PER = 9 if dyn else 8
    NDYN = 1024 - 32 * NSTAT
    kp = (" " + kpol) if kpol else ""
    wp = (" " + wpol) if wpol else ""

    def srd(base, lo, hi, size):
        A(f"s_mov_b32 s{base}, s{lo}")
        A(f"s_mov_b32 s{base+1}, s{hi}")
        A(f"s_mov_b32 s{base+2}, {size}")
        A(f"s_mov_b32 s{base+3}, 0x20000")

    def vr(a, n):
        return f"v[{a}:{a+n-1}]"

    def rbf(dst, src):
        A(f"v_cvt_pk_bf16_f32 v{dst}, v{src}, v{src}")
        A(f"v_and_b32 v{dst}, 0xffff0000, v{dst}")

    def row_sum(v, steps=(8, 4, 2, 1), op="v_add_f32"):
        for s in steps:
            A(f"{op}_dpp v{v}, v{v}, v{v} row_ror:{s} row_mask:0xf bank_mask:0xf")

    def swap_add(v, t, which, op="v_add_f32"):
        A(f"v_mov_b32 v{t}, v{v}")
        A(f"v_permlane{which}_swap_b32 v{v}, v{t}")
        A(f"{op} v{v}, v{v}, v{t}")

    def wave_sum(v, t):
        row_sum(v)
        swap_add(v, t, 16)
        swap_add(v, t, 32)

    def stamp(slot, sv=252, entry=False):
        if not diag or entry:
            return
        A(f"s_memrealtime s[{84+2*slot}:{85+2*slot}]")

    def flush_stamps(sv=248):
        if not diag:
            return
        A("s_mov_b64 exec, -1")
        A("s_waitcnt vmcnt(0) lgkmcnt(0)")
        A(f"s_lshl_b32 s82, s2, 9")
        A(f"s_lshl_b32 s83, s3, 6")
        A("s_add_u32 s82, s82, s83")
        A(f"s_add_u32 s82, s82, {TS_OFF}")
        A(f"v_mov_b32 v{sv+4}, 0")
        A("s_mov_b64 exec, 1")
        for k in range(4):
            for r in range(4):
                A(f"v_mov_b32 v{sv+r}, s{84+4*k+r}")
            A(f"buffer_store_dwordx4 v[{sv}:{sv+3}], v{sv+4}, s[36:39], s82 offen offset:{16*k}")
            A("s_nop 1")
        A("s_mov_b64 exec, -1")

    def endp():
        flush_stamps()
        A("s_endpgm")

    def ln(xin, tmp):
        t0, t1, t2, t3, t4, t5 = [tmp + i for i in range(6)]
        A(f"v_add_f32 v{t0}, v{xin}, v{xin+1}")
        for i in range(2, 10):
            A(f"v_add_f32 v{t0}, v{t0}, v{xin+i}")
        wave_sum(t0, t1)
        A(f"v_mul_f32 v{t0}, {fl(1.0/640.0)}, v{t0}")
        A(f"v_sub_f32 v{t2}, v{xin}, v{t0}")
        A(f"v_mul_f32 v{t3}, v{t2}, v{t2}")
        for i in range(1, 10):
            A(f"v_sub_f32 v{t2}, v{xin+i}, v{t0}")
            A(f"v_fmac_f32 v{t3}, v{t2}, v{t2}")
        wave_sum(t3, t1)
        A(f"v_mul_f32 v{t3}, {fl(1.0/640.0)}, v{t3}")
        rbf(t3, t3)
        A(f"v_add_f32 v{t3}, {fl(1e-5)}, v{t3}")
        rbf(t3, t3)
        A(f"v_sqrt_f32 v{t3}, v{t3}")
        rbf(t0, t0)
        rbf(t3, t3)
        A(f"v_rcp_f32 v{t3}, v{t3}")
        for i in range(0, 10, 2):
            A(f"v_sub_f32 v{t1}, v{xin+i}, v{t0}")
            A(f"v_sub_f32 v{t2}, v{xin+i+1}, v{t0}")
            A(f"v_cvt_pk_bf16_f32 v{t4}, v{t1}, v{t2}")
            A(f"v_lshlrev_b32 v{t1}, 16, v{t4}")
            A(f"v_and_b32 v{t2}, 0xffff0000, v{t4}")
            A(f"v_mul_f32 v{t1}, v{t1}, v{t3}")
            A(f"v_mul_f32 v{t2}, v{t2}, v{t3}")
            A(f"v_cvt_pk_bf16_f32 v{xin+i}, v{t1}, v{t1}")
            A(f"v_cvt_pk_bf16_f32 v{xin+i+1}, v{t2}, v{t2}")

    def unpack_pairs(src, dst, n):
        for k in range(n):
            A(f"v_lshlrev_b32 v{dst+2*k}, 16, v{src+k}")
            A(f"v_and_b32 v{dst+2*k+1}, 0xffff0000, v{src+k}")

    def sel_masks(m, lane, t0, t1, eight_rows):
        A(f"v_and_b32 v{t0}, 1, v{lane}")
        A(f"v_cmp_eq_u32 vcc, 1, v{t0}")
        A(f"v_mov_b32 v{t0}, 0x0000ffff")
        A(f"v_mov_b32 v{t1}, 0xffff0000")
        A(f"v_cndmask_b32 v{t0}, v{t0}, v{t1}, vcc")
        A(f"v_and_b32 v{t1}, {15 if eight_rows else 7}, v{lane}")
        A(f"v_lshrrev_b32 v{t1}, 1, v{t1}")
        for r in range(4):
            A(f"v_cmp_eq_u32 vcc, {r}, v{t1}")
            A(f"v_cndmask_b32 v{m+r}, 0, v{t0}, vcc")

    def sel_gemv(n, vals, W, aset, masks, D, waits=None):
        for t in range(n):
            if waits and t in waits:
                A(f"s_waitcnt vmcnt({waits[t]})")
            a = aset + 4 * (t & 1)
            for r in range(4):
                A(f"v_and_b32 v{a+r}, v{vals+t}, v{masks+r}")
            c = "0" if t == 0 else vr(D, 4)
            A(f"v_mfma_f32_16x16x32_bf16 {vr(D,4)}, {vr(a,4)}, {vr(W+4*t,4)}, {c}")

    def tagcheck(acc, g, first):
        if first:
            A(f"v_xor_b32 v{acc}, s30, v{g+1}")
        else:
            A(f"v_bitop3_b32 v{acc}, v{acc}, v{g+1}, s30 bitop3:0xf6")
        A(f"v_bitop3_b32 v{acc}, v{acc}, v{g+3}, s31 bitop3:0xf6")

    def poll_branch(label):
        A(f"s_cbranch_vccz {label}_OK")
        if psleep:
            A(f"s_sleep {psleep}")
        A("s_add_u32 s80, s80, 1")
        A(f"s_cmp_lt_u32 s80, {POLL_MAX}")
        A(f"s_cbranch_scc1 {label}")
        A(f"{label}_OK:")

    def read_flag(vt, sdst):
        A(f"v_mov_b32 v{vt}, 0")
        A(f"ds_read_b32 v{vt}, v{vt} offset:{L_FLAG}")
        A("s_waitcnt lgkmcnt(0)")
        A(f"v_readfirstlane_b32 s{sdst}, v{vt}")

    def wait_flag(label, vt=2, sdst=81):
        A("s_mov_b32 s82, 0")
        A(f"{label}:")
        read_flag(vt, sdst)
        A(f"s_cmp_lg_u32 s{sdst}, 0")
        A(f"s_cbranch_scc1 {label}_OK")
        A("s_add_u32 s82, s82, 1")
        A(f"s_cmp_lt_u32 s82, {POLL_MAX*16}")
        A(f"s_cbranch_scc1 {label}")
        A(f"{label}_OK:")

    def get_tags():
        A("s_waitcnt lgkmcnt(0)")
        A(f"s_add_u32 s30, s30, {TAG0}")
        A(f"s_add_u32 s31, s31, {TAG1}")

    if header:
        hdr = open("parallel_sum__gqa_block_cached__mixer_channel_mlp__decode.s.ref").read().split("\n")
        for ln_ in hdr:
            if ln_.startswith("; @launch") or ln_.startswith(".amdgcn_target"):
                break
            if ln_.startswith("; Override") or ln_.startswith("; grid="):
                continue
            L.append(ln_)
    L.append(f"; @launch grid=(256,1,1) block=(512,1,1) lds={LDS_SIZE}")
    L.append('.amdgcn_target "amdgcn-amd-amdhsa--gfx950"')
    L.append(".text")
    L.append(f".globl {NAME}")
    L.append(".p2align 8")
    L.append(f".type {NAME},@function")
    L.append(f"{NAME}:")

    C("256 workgroups x 8 waves. waves 0..2 helpers, wave 3 unused, waves 4..7 stream K/V")
    if diag:
        A("s_memrealtime s[96:97]")
        for r in list(range(84, 96)) + [98, 99]:
            A(f"s_mov_b32 s{r}, 0x5a5a5a5a")
    A("s_cmp_ge_u32 s2, 256")
    A("s_cbranch_scc1 L_END")
    A("s_load_dwordx16 s[4:19], s[0:1], 0")
    A("s_load_dwordx8 s[20:27], s[0:1], 64")
    A("s_load_dwordx2 s[28:29], s[0:1], 96")
    A("v_lshrrev_b32 v1, 6, v0")
    A("v_and_b32 v0, 63, v0")
    A("v_readfirstlane_b32 s3, v1")
    A("s_lshr_b32 s32, s2, 3")
    A("s_and_b32 s33, s2, 7")
    if xmaj:
        A("s_lshl_b32 s34, s33, 5")
        A("s_add_u32 s34, s34, s32")
        A("s_lshr_b32 s32, s34, 3")
        A("s_and_b32 s33, s34, 7")
    A("s_lshl_b32 s34, s33, 2")
    A("s_lshr_b32 s35, s2, 6")
    A("s_add_u32 s34, s34, s35")
    A("s_and_b32 s35, s32, 7")
    A("s_waitcnt lgkmcnt(0)")
    A("s_cmp_eq_u32 s3, 3")
    A("s_cbranch_scc1 L_END")
    srd(36, 28, 29, WS_SIZE)
    A("s_cmp_ge_u32 s3, 4")
    A("s_cbranch_scc1 L_STREAM")
    A(f"s_load_dwordx2 s[30:31], s[28:29], {R_OFF}")
    A("s_mov_b32 s80, 0")
    A("s_cmp_eq_u32 s3, 1")
    A("s_cbranch_scc1 L_H1")
    A("s_cmp_eq_u32 s3, 2")
    A("s_cbranch_scc1 L_H2")

    C("---- H0 ----")
    X = 10
    XF = 16
    T = 26
    MK = 32
    AS = 36
    D = 44
    VAL = 48
    G = 68
    W = 100
    srd(40, 4, 5, 1280)
    srd(44, 10, 11, 640 * 8192)
    A("v_lshlrev_b32 v2, 2, v0")
    for k in range(5):
        A(f"buffer_load_dword v{X+k}, v2, s[40:43], 0 offen offset:{256*k}")
    if dyn:
        A("s_lshl_b32 s58, s32, 8")
        A(f"s_add_u32 s58, s58, {CNT_OFF}")
        A("v_mov_b32 v15, 0")
        A("buffer_load_dword v15, v15, s[36:39], s58 offen sc1")
    A("v_lshrrev_b32 v4, 4, v0")
    A("v_and_b32 v5, 15, v0")
    A(f"v_mul_u32_u24 v3, {20*8192}, v4")
    A("v_lshl_add_u32 v3, v5, 4, v3")
    qh, qc = ("s32", "s33") if qmap else ("s34", "s35")
    if noq:
        A("s_barrier")
        A("v_mov_b32 v7, 0")
        A("v_mov_b32 v8, 1")
        A(f"ds_write_b32 v7, v8 offset:{L_FLAG}")
        endp()
    if prio:
        A(f"s_setprio {prio}")
    A(f"s_mul_i32 s56, {qc}, {80*8192}")
    A(f"s_lshl_b32 s57, {qh}, 8")
    A("s_add_u32 s56, s56, s57")
    for t in range(20):
        A(f"buffer_load_dwordx4 {vr(W+4*t,4)}, v3, s[44:47], s56 offen{wp}")
        if t < 19:
            A("s_add_u32 s56, s56, 8192")
    if b0late:
        A(f"s_waitcnt vmcnt({20 - b0late})")
    A("s_barrier")
    stamp(0)
    stamp(6, entry=True)
    sel_masks(MK, 0, T, T + 1, True)
    A("v_lshlrev_b32 v6, 3, v0")
    A(f"v_mul_u32_u24 v7, 80, v4")
    A(f"s_mul_i32 s57, {qc}, 320")
    A("v_add_u32 v7, s57, v7")
    A("s_waitcnt vmcnt(20)")
    unpack_pairs(X, XF, 5)
    ln(XF, T)
    for k in range(5):
        A(f"ds_write_b64 v6, {vr(XF+2*k,2)} offset:{L_XN2+512*k}")
    A("s_waitcnt lgkmcnt(0)")
    for i in range(5):
        A(f"ds_read_b128 {vr(VAL+4*i,4)}, v7 offset:{L_XN2+16*i}")
    get_tags()
    stamp(1)
    sel_gemv(20, VAL, W, AS, MK, D, waits={0: 15, 5: 10, 10: 5, 15: 0})
    A("v_lshlrev_b32 v8, 6, v5")
    A("v_lshl_add_u32 v8, v4, 5, v8")
    A(f"s_lshl_b32 s57, {qh}, 3")
    A(f"s_add_u32 s57, s57, {qc}")
    A("s_lshl_b32 s57, s57, 10")
    A(f"s_add_u32 s57, s57, {QP_OFF}")
    A(f"v_mov_b32 v{G+1}, s30")
    A(f"v_mov_b32 v{G+3}, s31")
    A(f"v_mov_b32 v{G+5}, s30")
    A(f"v_mov_b32 v{G+7}, s31")
    A(f"v_mov_b32 v{G}, v{D}")
    A(f"v_mov_b32 v{G+2}, v{D+1}")
    A(f"v_mov_b32 v{G+4}, v{D+2}")
    A(f"v_mov_b32 v{G+6}, v{D+3}")
    A("s_mov_b32 exec_hi, 0")
    A(f"buffer_store_dwordx4 {vr(G,4)}, v8, s[36:39], s57 offen sc1")
    A(f"buffer_store_dwordx4 {vr(G+4,4)}, v8, s[36:39], s57 offen offset:16 sc1")
    A("s_mov_b64 exec, -1")
    stamp(2)
    if pubwait & 1:
        A("s_waitcnt vmcnt(0)")
    A("v_lshlrev_b32 v9, 4, v0")
    A("s_lshl_b32 s58, s32, 13")
    A(f"s_add_u32 s58, s58, {QP_OFF}")
    A("s_add_u32 s59, s58, 4096")
    A("L_H0_POLL:")
    for k in range(8):
        so = "s58" if k < 4 else "s59"
        A(f"buffer_load_dwordx4 {vr(G+4*k,4)}, v9, s[36:39], {so} offen offset:{1024*(k&3)} sc1")
    A("s_waitcnt vmcnt(0)")
    for k in range(8):
        tagcheck(T, G + 4 * k, k == 0)
    A(f"v_cmp_ne_u32 vcc, 0, v{T}")
    poll_branch("L_H0_POLL")
    A(f"v_add_f32 v{T}, v{G}, v{G+4}")
    A(f"v_add_f32 v{T+1}, v{G+2}, v{G+6}")
    for k in range(2, 8):
        A(f"v_add_f32 v{T}, v{T}, v{G+4*k}")
        A(f"v_add_f32 v{T+1}, v{T+1}, v{G+4*k+2}")
    A(f"v_cvt_pk_bf16_f32 v{T}, v{T}, v{T+1}")
    A("v_lshlrev_b32 v6, 2, v0")
    A(f"ds_write_b32 v6, v{T} offset:{L_Q}")
    A("v_mov_b32 v7, 0")
    A("v_mov_b32 v8, 1")
    if dyn:
        A(f"ds_write_b32 v7, v15 offset:{L_FLAG+4}")
    A("s_waitcnt lgkmcnt(0)")
    A(f"ds_write_b32 v7, v8 offset:{L_FLAG}")
    stamp(3)
    endp()

    C("---- H1 ----")
    A("L_H1:")
    if hprio:
        A(f"s_setprio {hprio}")
    A("v_mov_b32 v2, 0")
    A(f"ds_write_b32 v2, v2 offset:{L_FLAG}")
    if ldyn:
        A(f"v_mov_b32 v3, {4*NP}")
        A(f"ds_write_b32 v2, v3 offset:{L_FLAG+8}")
    A("s_waitcnt lgkmcnt(0)")
    A("s_barrier")
    get_tags()
    wait_flag("L_H1_QW")
    if noh:
        endp()
    if zmap:
        A("s_lshr_b32 s57, s2, 6")
        A("s_and_b32 s58, s2, 7")
        A("s_sub_u32 s56, s58, 3")
        A("s_lshl_b32 s56, s56, 3")
        A("s_add_u32 s56, s56, s35")
        A("s_mul_i32 s34, s58, 3")
        A("s_add_u32 s34, s34, s57")
        A("s_cmp_lt_u32 s57, 3")
        A("s_cbranch_scc1 L_H1_MLP")
        A("s_add_u32 s34, s58, 24")
        A("s_cmp_ge_u32 s58, 3")
        A("s_cbranch_scc1 L_FIN")
        A("L_H1_MLP:")
    else:
        A("s_mul_i32 s56, s35, 5")
        A("s_add_u32 s56, s56, s34")
        A("s_sub_u32 s56, s56, 27")
        A("s_cmp_ge_u32 s34, 27")
        A("s_cbranch_scc1 L_FIN")
    stamp(0)
    if h1stop == 0:
        endp()
    W1 = 100
    W2 = 140
    B1 = 15
    srd(40, 4, 5, 1280)
    srd(44, 16, 17, 640 * 3456)
    srd(48, 20, 21, 1728 * 1280)
    srd(52, 18, 19, 3456)
    A("v_lshlrev_b32 v2, 2, v0")
    for k in range(5):
        A(f"buffer_load_dword v{X+k}, v2, s[40:43], 0 offen offset:{256*k}")
    A("v_lshrrev_b32 v4, 4, v0")
    A("v_and_b32 v5, 15, v0")
    A("v_bfe_u32 v6, v0, 3, 1")
    A("v_and_b32 v7, 7, v0")
    A("v_mul_u32_u24 v8, 20, v4")
    A("v_mad_u32_u24 v8, v6, 10, v8")
    A(f"v_mul_u32_u24 v3, 3456, v8")
    A("v_lshl_add_u32 v3, v7, 4, v3")
    A(f"s_mul_i32 s56, s35, {80*3456}")
    A("s_lshl_b32 s57, s34, 7")
    A("s_add_u32 s56, s56, s57")
    for t in range(10):
        A(f"buffer_load_dwordx4 {vr(W1+4*t,4)}, v3, s[44:47], s56 offen{wp}")
        if t < 9:
            A("s_add_u32 s56, s56, 3456")
    A("v_and_b32 v9, 31, v0")
    A("v_lshlrev_b32 v9, 2, v9")
    A(f"buffer_load_dword v{B1}, v9, s[52:55], s57 offen")
    A(f"v_mul_u32_u24 v3, {16*1280}, v4")
    A("v_lshl_add_u32 v3, v5, 4, v3")
    A("v_cmp_gt_u32 vcc, 10, v5")
    A(f"v_mov_b32 v9, {OOB}")
    A("v_cndmask_b32 v3, v9, v3, vcc")
    A(f"s_mul_i32 s56, s34, {64*1280}")
    A("s_mul_i32 s57, s35, 160")
    A("s_add_u32 s56, s56, s57")
    for t in range(16):
        A(f"buffer_load_dwordx4 {vr(W2+4*t,4)}, v3, s[48:51], s56 offen{wp}")
        if t < 15:
            A("s_add_u32 s56, s56, 1280")
    sel_masks(MK, 0, T, T + 1, False)
    A("v_lshlrev_b32 v6, 3, v0")
    A("s_mul_i32 s57, s35, 320")
    A("v_lshlrev_b32 v8, 2, v8")
    A("v_add_u32 v8, s57, v8")
    A("s_waitcnt vmcnt(27)")
    stamp(1)
    if h1stop == 1:
        A("s_waitcnt vmcnt(17)")
        stamp(2)
        A("s_waitcnt vmcnt(0)")
        stamp(4)
        endp()
    unpack_pairs(X, XF, 5)
    ln(XF, T)
    for i in range(10):
        A(f"v_and_b32 v{XF+i}, 0xffff0000, v{XF+i}")
    ln(XF, T)
    for k in range(5):
        A(f"ds_write_b64 v6, {vr(XF+2*k,2)} offset:{L_Y2+512*k}")
    A("s_waitcnt lgkmcnt(0)")
    for i in range(5):
        A(f"ds_read_b64 {vr(VAL+2*i,2)}, v8 offset:{L_Y2+8*i}")
    A("s_waitcnt lgkmcnt(0)")
    A("s_waitcnt vmcnt(17)")
    stamp(2)
    sel_gemv(10, VAL, W1, AS, MK, D)
    A("v_add_u32 v9, 40, v0")
    A("v_lshlrev_b32 v9, 2, v9")
    for r in range(4):
        A(f"ds_bpermute_b32 v{T+r}, v9, v{D+r}")
    A("s_waitcnt lgkmcnt(0)")
    A(f"v_mov_b32 v{G+1}, s30")
    A(f"v_mov_b32 v{G+3}, s31")
    A(f"v_mov_b32 v{G+5}, s30")
    A(f"v_mov_b32 v{G+7}, s31")
    for r in range(4):
        A(f"v_add_f32 v{G+2*r}, v{D+r}, v{T+r}")
    A("v_lshlrev_b32 v8, 6, v5")
    A("v_lshl_add_u32 v8, v4, 5, v8")
    A("s_lshl_b32 s57, s34, 3")
    A("s_add_u32 s57, s57, s35")
    A("s_lshl_b32 s57, s57, 9")
    A(f"s_add_u32 s57, s57, {ZP_OFF}")
    A("s_mov_b32 s60, 0x00ff00ff")
    A("s_mov_b32 s61, 0")
    A("s_mov_b64 exec, s[60:61]")
    A(f"buffer_store_dwordx4 {vr(G,4)}, v8, s[36:39], s57 offen sc1")
    A(f"buffer_store_dwordx4 {vr(G+4,4)}, v8, s[36:39], s57 offen offset:16 sc1")
    A("s_mov_b64 exec, -1")
    stamp(3)
    if h1stop == 2:
        A("s_waitcnt vmcnt(0)")
        stamp(4)
        endp()
    if pubwait & 2:
        A("s_waitcnt vmcnt(0)")
    A("v_lshlrev_b32 v9, 4, v0")
    A("s_lshl_b32 s58, s34, 12")
    A(f"s_add_u32 s58, s58, {ZP_OFF}")
    A("L_H1_POLL:")
    for k in range(4):
        A(f"buffer_load_dwordx4 {vr(G+4*k,4)}, v9, s[36:39], s58 offen offset:{1024*k} sc1")
    A("s_waitcnt vmcnt(0)")
    for k in range(4):
        tagcheck(T, G + 4 * k, k == 0)
    A(f"v_cmp_ne_u32 vcc, 0, v{T}")
    poll_branch("L_H1_POLL")
    stamp(7)
    if h1stop == 3:
        stamp(4)
        endp()
    A(f"v_add_f32 v{T}, v{G}, v{G+4}")
    A(f"v_add_f32 v{T+1}, v{G+2}, v{G+6}")
    for k in range(2, 4):
        A(f"v_add_f32 v{T}, v{T}, v{G+4*k}")
        A(f"v_add_f32 v{T+1}, v{T+1}, v{G+4*k+2}")
    swap_add(T, T + 2, 32)
    swap_add(T + 1, T + 2, 32)
    c1 = -2.0 * 0.7978845608028654 * LOG2E
    c2 = c1 * 0.044715
    A(f"s_mov_b32 s62, {fl(c2)}")
    for e in range(2):
        z = T + e
        rbf(z, z)
        if e == 0:
            A(f"v_lshlrev_b32 v{T+2}, 16, v{B1}")
        else:
            A(f"v_and_b32 v{T+2}, 0xffff0000, v{B1}")
        A(f"v_add_f32 v{z}, v{z}, v{T+2}")
        rbf(z, z)
        A(f"v_mul_f32 v{T+2}, v{z}, v{z}")
        A(f"v_mov_b32 v{T+3}, {fl(c1)}")
        A(f"v_fmac_f32 v{T+3}, s62, v{T+2}")
        A(f"v_mul_f32 v{T+3}, v{T+3}, v{z}")
        A(f"v_exp_f32 v{T+3}, v{T+3}")
        A(f"v_add_f32 v{T+3}, 1.0, v{T+3}")
        A(f"v_rcp_f32 v{T+3}, v{T+3}")
        A(f"v_mul_f32 v{z}, v{z}, v{T+3}")
        A(f"v_cvt_pk_bf16_f32 v{z}, v{z}, v{z}")
    A("v_and_b32 v6, 31, v0")
    A("v_lshlrev_b32 v6, 3, v6")
    A(f"ds_write_b64 v6, {vr(T,2)} offset:{L_HH2}")
    A("v_lshlrev_b32 v7, 6, v4")
    A("s_waitcnt lgkmcnt(0)")
    for i in range(4):
        A(f"ds_read_b128 {vr(VAL+4*i,4)}, v7 offset:{L_HH2+16*i}")
    sel_masks(MK, 0, T + 2, T + 3, True)
    A("s_waitcnt lgkmcnt(0)")
    sel_gemv(16, VAL, W2, AS, MK, D)
    A("v_lshrrev_b32 v6, 1, v5")
    A("v_lshlrev_b32 v6, 12, v6")
    A("v_and_b32 v7, 1, v5")
    A("v_lshl_add_u32 v6, v7, 6, v6")
    A("v_lshl_add_u32 v6, v4, 5, v6")
    A(f"s_mul_i32 s57, s35, {5*4096}")
    A("s_lshl_b32 s58, s34, 7")
    A("s_add_u32 s57, s57, s58")
    A(f"s_add_u32 s57, s57, {BP_OFF}")
    A(f"v_mov_b32 v{G+1}, s30")
    A(f"v_mov_b32 v{G+3}, s31")
    A(f"v_mov_b32 v{G+5}, s30")
    A(f"v_mov_b32 v{G+7}, s31")
    for r in range(4):
        A(f"v_mov_b32 v{G+2*r}, v{D+r}")
    A("s_mov_b32 s60, 0x03ff03ff")
    A("s_mov_b32 s61, 0")
    A("s_mov_b64 exec, s[60:61]")
    A(f"buffer_store_dwordx4 {vr(G,4)}, v6, s[36:39], s57 offen sc1")
    A(f"buffer_store_dwordx4 {vr(G+4,4)}, v6, s[36:39], s57 offen offset:16 sc1")
    A("s_mov_b64 exec, -1")
    stamp(4)
    endp()

    C("---- final consumer: 16 output columns ----")
    A("L_FIN:")
    if finoff:
        endp()
    XP = 10; B2P = 11; BV = 12
    srd(40, 4, 5, 1280)
    srd(44, 22, 23, 1280)
    srd(48, 24, 25, 1280)
    A("s_lshl_b32 s57, s56, 5")
    A("v_and_b32 v2, 7, v0")
    A("v_lshlrev_b32 v2, 2, v2")
    A(f"buffer_load_dword v{XP}, v2, s[40:43], s57 offen")
    A(f"buffer_load_dword v{B2P}, v2, s[44:47], s57 offen")
    A("v_lshlrev_b32 v9, 4, v0")
    A(f"v_mov_b32 v3, {OOB}")
    A("v_cmp_gt_u32 vcc, 24, v0")
    A("v_cndmask_b32 v3, v3, v9, vcc")
    A("s_lshl_b32 s58, s56, 12")
    A(f"s_add_u32 s59, s58, {AP_OFF}")
    A(f"s_add_u32 s58, s58, {BP_OFF}")

    def gather_sum(label, soff, partial_last):
        A(f"{label}:")
        for k in range(4):
            va = "v3" if (partial_last and k == 3) else "v9"
            A(f"buffer_load_dwordx4 {vr(G+4*k,4)}, {va}, s[36:39], {soff} offen offset:{1024*k} sc1")
        A("s_waitcnt vmcnt(0)")
        for k in range(4):
            if partial_last and k == 3:
                A("s_mov_b64 exec, 0xffffff")
            tagcheck(T, G + 4 * k, k == 0)
            if partial_last and k == 3:
                A("s_mov_b64 exec, -1")
        A(f"v_cmp_ne_u32 vcc, 0, v{T}")
        poll_branch(label)
        A(f"v_add_f32 v{T}, v{G}, v{G+4}")
        A(f"v_add_f32 v{T+1}, v{G+2}, v{G+6}")
        for k in range(2, 4):
            A(f"v_add_f32 v{T}, v{T}, v{G+4*k}")
            A(f"v_add_f32 v{T+1}, v{T+1}, v{G+4*k+2}")
        row_sum(T, steps=(8,))
        row_sum(T + 1, steps=(8,))
        swap_add(T, T + 2, 16)
        swap_add(T + 1, T + 3, 16)
        swap_add(T, T + 2, 32)
        swap_add(T + 1, T + 3, 32)

    if finlate and h2stop == 9:
        stamp(4)
        A("s_barrier")
    gather_sum("L_FIN_POLLB", "s58", True)
    for e in range(2):
        rbf(T + e, T + e)
        if e == 0:
            A(f"v_lshlrev_b32 v{T+2}, 16, v{B2P}")
        else:
            A(f"v_and_b32 v{T+2}, 0xffff0000, v{B2P}")
        A(f"v_add_f32 v{T+e}, v{T+e}, v{T+2}")
        rbf(BV + e, T + e)
    A(f"v_lshlrev_b32 v14, 16, v{XP}")
    A(f"v_and_b32 v15, 0xffff0000, v{XP}")
    if not (finlate and h2stop == 9):
        stamp(4)
        if h2stop < 9:
            endp()
        A("s_barrier")
    gather_sum("L_FIN_POLLA", "s59", False)
    for e in range(2):
        rbf(T + e, T + e)
        A(f"v_add_f32 v{T+e}, v{T+e}, v{14+e}")
        rbf(T + e, T + e)
        A(f"v_add_f32 v{T+e}, v{T+e}, v{BV+e}")
    A(f"v_cvt_pk_bf16_f32 v{T}, v{T}, v{T+1}")
    A("s_mov_b64 exec, 0xff")
    A(f"buffer_store_dword v{T}, v2, s[48:51], s57 offen")
    A("s_cmp_lg_u32 s56, 0")
    A("s_cbranch_scc1 L_FIN_DONE")
    A("s_mov_b64 exec, 1")
    A("v_mov_b32 v4, s30")
    A("v_mov_b32 v5, s31")
    A(f"v_mov_b32 v6, {R_OFF}")
    A("buffer_store_dwordx2 v[4:5], v6, s[36:39], 0 offen sc1")
    A("L_FIN_DONE:")
    stamp(5)
    endp()

    C("---- H2 ----")
    A("L_H2:")
    if hprio:
        A(f"s_setprio {hprio}")
    A("s_barrier")
    get_tags()
    wait_flag("L_H2_QW")
    if noh:
        endp()
    stamp(0)
    if h2stop == 0:
        endp()
    WS_ = 100
    WB = 16
    T2 = 2
    G2 = 180
    D2 = 216
    AO = 236
    srd(40, 12, 13, 4096 * 1280)
    A(f"s_mul_i32 s56, s34, {128*1280}")
    A("s_mul_i32 s57, s35, 160")
    A("s_add_u32 s56, s56, s57")
    for k in range(20):
        A(f"v_add_u32 v2, {64*k}, v0")
        A("v_mul_u32_u24 v3, 6554, v2")
        A("v_lshrrev_b32 v3, 16, v3")
        A("v_mul_u32_u24 v4, 10, v3")
        A("v_sub_u32 v4, v2, v4")
        A("v_mul_u32_u24 v3, 1280, v3")
        A("v_lshl_add_u32 v3, v4, 4, v3")
        A(f"buffer_load_dwordx4 {vr(WS_+4*k,4)}, v3, s[40:43], s56 offen{wp}")
    A("v_lshlrev_b32 v2, 4, v0")
    if h2stop == 1:
        A("s_waitcnt vmcnt(0)")
        stamp(4)
        endp()
    for k in range(20):
        A(f"s_waitcnt vmcnt({19-k})")
        A(f"ds_write_b128 v2, {vr(WS_+4*k,4)} offset:{L_WO+1024*k}")
    A("s_waitcnt lgkmcnt(0)")
    stamp(1)
    if h2stop == 2:
        stamp(4)
        endp()
    A("v_lshrrev_b32 v4, 4, v0")
    A("v_and_b32 v5, 15, v0")
    A(f"v_mul_u32_u24 v3, {8*160}, v4")
    A("v_lshl_add_u32 v3, v5, 1, v3")
    for kk in range(4):
        for n in range(5):
            b = WB + (kk * 5 + n) * 4
            for r in range(4):
                o = L_WO + (32 * kk + 2 * r) * 160 + 32 * n
                A(f"ds_read_u16 v{b+r}, v3 offset:{o}")
                A(f"ds_read_u16 v{6+r}, v3 offset:{o+160}")
            A("s_waitcnt lgkmcnt(0)")
            for r in range(4):
                A(f"v_lshl_or_b32 v{b+r}, v{6+r}, 16, v{b+r}")
    A("v_lshlrev_b32 v2, 3, v0")
    A("v_lshlrev_b32 v3, 4, v0")
    A("v_mov_b32 v10, 0")
    A("s_lshl_b32 s57, s2, 10")
    A(f"s_add_u32 s57, s57, {OP_OFF}")
    A("s_lshl_b32 s58, s32, 7")
    A("s_lshl_b32 s59, s33, 4")
    A("s_add_u32 s58, s58, s59")
    A(f"s_add_u32 s58, s58, {ML_OFF}")
    A("s_lshl_b32 s59, s34, 13")
    A(f"s_add_u32 s59, s59, {OP_OFF}")
    A("s_add_u32 s60, s59, 4096")
    A("s_lshl_b32 s61, s34, 7")
    A(f"s_add_u32 s61, s61, {ML_OFF}")
    A("v_and_b32 v11, 7, v0")
    A("v_lshlrev_b32 v11, 4, v11")
    A("v_lshlrev_b32 v12, 4, v4")
    A("v_lshlrev_b32 v13, 2, v0")
    A("v_lshlrev_b32 v14, 12, v4")
    A("v_lshrrev_b32 v15, 1, v5")
    A("v_lshl_add_u32 v14, v15, 4, v14")
    A("v_lshlrev_b32 v15, 4, v15")
    A(f"s_mul_i32 s62, s35, {5*4096}")
    A("s_lshl_b32 s63, s34, 7")
    A("s_add_u32 s62, s62, s63")
    A(f"s_add_u32 s62, s62, {AP_OFF}")
    A("s_add_u32 s63, s62, 16384")
    stamp(4)
    if h2stop == 3:
        endp()
    A("s_barrier")
    stamp(5)
    P = G2
    for w in range(4):
        A(f"ds_read_b64 {vr(P+2*w,2)}, v2 offset:{L_PART+576*w}")
        A(f"ds_read_b64 {vr(P+8+2*w,2)}, v10 offset:{L_PART+576*w+512}")
    A("s_waitcnt lgkmcnt(0)")
    M = P + 16
    A(f"v_max3_f32 v{M}, v{P+8}, v{P+10}, v{P+12}")
    A(f"v_max_f32 v{M}, v{M}, v{P+14}")
    for w in range(4):
        A(f"v_sub_f32 v{P+8+2*w}, v{P+8+2*w}, v{M}")
        A(f"v_mul_f32 v{P+8+2*w}, {fl(LOG2E)}, v{P+8+2*w}")
        A(f"v_exp_f32 v{P+8+2*w}, v{P+8+2*w}")
    GR = P + 20
    A(f"v_mul_f32 v{GR}, v{P+8}, v{P}")
    A(f"v_mul_f32 v{GR+2}, v{P+8}, v{P+1}")
    A(f"v_mul_f32 v{GR+6}, v{P+8}, v{P+9}")
    for w in range(1, 4):
        A(f"v_fmac_f32 v{GR}, v{P+8+2*w}, v{P+2*w}")
        A(f"v_fmac_f32 v{GR+2}, v{P+8+2*w}, v{P+2*w+1}")
        A(f"v_fmac_f32 v{GR+6}, v{P+8+2*w}, v{P+9+2*w}")
    A(f"v_mov_b32 v{GR+1}, s30")
    A(f"v_mov_b32 v{GR+3}, s31")
    A(f"v_mov_b32 v{GR+4}, v{M}")
    A(f"v_mov_b32 v{GR+5}, s30")
    A(f"v_mov_b32 v{GR+7}, s31")
    A(f"buffer_store_dwordx4 {vr(GR,4)}, v3, s[36:39], s57 offen sc1")
    A("s_mov_b64 exec, 1")
    A(f"buffer_store_dwordx4 {vr(GR+4,4)}, v10, s[36:39], s58 offen sc1")
    A("s_mov_b64 exec, -1")
    stamp(6)
    ML = G2 + 32
    A("s_nop 1")
    A("L_H2_POLL:")
    for k in range(8):
        so = "s59" if k < 4 else "s60"
        A(f"buffer_load_dwordx4 {vr(G2+4*k,4)}, v3, s[36:39], {so} offen offset:{1024*(k&3)} sc1")
    A(f"buffer_load_dwordx4 {vr(ML,4)}, v11, s[36:39], s61 offen sc1")
    A("s_waitcnt vmcnt(0)")
    tagcheck(6, ML, True)
    for k in range(8):
        tagcheck(6, G2 + 4 * k, False)
    A("v_cmp_ne_u32 vcc, 0, v6")
    poll_branch("L_H2_POLL")
    stamp(7)
    A(f"v_max_f32_dpp v6, v{ML}, v{ML} row_ror:4 row_mask:0xf bank_mask:0xf")
    A("v_max_f32_dpp v6, v6, v6 row_ror:2 row_mask:0xf bank_mask:0xf")
    A("v_max_f32_dpp v6, v6, v6 row_ror:1 row_mask:0xf bank_mask:0xf")
    A(f"v_sub_f32 v6, v{ML}, v6")
    A(f"v_mul_f32 v6, {fl(LOG2E)}, v6")
    A("v_exp_f32 v6, v6")
    A(f"v_mul_f32 v7, v6, v{ML+2}")
    row_sum(7, steps=(4, 2, 1))
    A("v_rcp_f32 v7, v7")
    A("v_mul_f32 v6, v6, v7")
    A(f"v_mul_f32_dpp v8, v6, v{G2} row_newbcast:0 row_mask:0xf bank_mask:0xf")
    A(f"v_mul_f32_dpp v9, v6, v{G2+2} row_newbcast:0 row_mask:0xf bank_mask:0xf")
    for k in range(1, 8):
        A(f"v_fmac_f32_dpp v8, v6, v{G2+4*k} row_newbcast:{k} row_mask:0xf bank_mask:0xf")
        A(f"v_fmac_f32_dpp v9, v6, v{G2+4*k+2} row_newbcast:{k} row_mask:0xf bank_mask:0xf")
    A("v_cvt_pk_bf16_f32 v8, v8, v9")
    A(f"ds_write_b32 v13, v8 offset:{L_O}")
    A("s_waitcnt lgkmcnt(0)")
    for kk in range(4):
        A(f"ds_read_b128 {vr(AO+4*kk,4)}, v12 offset:{L_O+64*kk}")
    A("s_waitcnt lgkmcnt(0)")
    for kk in range(4):
        for n in range(5):
            b = WB + (kk * 5 + n) * 4
            c = "0" if kk == 0 else vr(D2 + 4 * n, 4)
            A(f"v_mfma_f32_16x16x32_bf16 {vr(D2+4*n,4)}, {vr(AO+4*kk,4)}, {vr(b,4)}, {c}")
    GA = G2
    A("v_cmp_eq_u32 s[64:65], 1, v4")
    A("v_cmp_eq_u32 s[66:67], 2, v4")
    A("v_cmp_eq_u32 s[68:69], 3, v4")
    A(f"v_mov_b32 v{GA+1}, s30")
    A(f"v_mov_b32 v{GA+3}, s31")
    A(f"v_mov_b32 v{GA+5}, s30")
    A(f"v_mov_b32 v{GA+7}, s31")
    A(f"v_cndmask_b32 v{GA}, v{D2}, v{D2+4}, s[64:65]")
    A(f"v_cndmask_b32 v{GA}, v{GA}, v{D2+8}, s[66:67]")
    A(f"v_cndmask_b32 v{GA}, v{GA}, v{D2+12}, s[68:69]")
    A(f"v_mov_b32 v{GA+4}, v{D2+16}")
    A(f"v_mov_b32_dpp v{GA+2}, v{GA} quad_perm:[1,0,3,2] row_mask:0xf bank_mask:0xf")
    A(f"v_mov_b32_dpp v{GA+6}, v{GA+4} quad_perm:[1,0,3,2] row_mask:0xf bank_mask:0xf")
    A("s_mov_b32 s70, 0x55555555")
    A("s_mov_b32 s71, 0x55555555")
    A("s_mov_b64 exec, s[70:71]")
    A(f"buffer_store_dwordx4 {vr(GA,4)}, v14, s[36:39], s62 offen sc1")
    A("s_mov_b64 exec, 0x5555")
    A(f"buffer_store_dwordx4 {vr(GA+4,4)}, v15, s[36:39], s63 offen sc1")
    stamp(3)
    endp()

    C("---- streamers ----")
    A("L_STREAM:")
    if sprio:
        A(f"s_setprio {sprio}")
    RB = 64
    NS = NP
    AQ = 8
    MKS = 24
    DSC = 28
    DO = 32
    PA = 36
    vS, vT, vP, vP2s, vP2, vL, vM, vT2 = 44, 45, 46, 47, 48, 49, 50, 51
    vK, vV = 2, 3
    assert RB + 32 * NS <= 256
    A("s_lshl_b32 s56, s32, 22")
    A("s_add_u32 s40, s6, s56")
    A("s_addc_u32 s41, s7, 0")
    A(f"s_mov_b32 s42, {4<<20}")
    A("s_mov_b32 s43, 0x20000")
    A("s_add_u32 s44, s8, s56")
    A("s_addc_u32 s45, s9, 0")
    A(f"s_mov_b32 s46, {4<<20}")
    A("s_mov_b32 s47, 0x20000")
    A("v_lshrrev_b32 v4, 4, v0")
    A("v_and_b32 v5, 15, v0")
    A(f"v_lshlrev_b32 v{vK}, 8, v5")
    A(f"v_lshl_add_u32 v{vK}, v4, 4, v{vK}")
    A(f"v_lshlrev_b32 v{vV}, 4, v0")
    A(f"s_mul_i32 s56, s33, {NSTAT*16384}")
    A("s_sub_u32 s57, s3, 4")
    A("s_lshl_b32 s57, s57, 12")
    A("s_add_u32 s56, s56, s57")
    A("s_mov_b32 s57, 0")
    SOFF = 60
    TK = 56
    vAT = 62
    if dyn:
        A(f"v_mov_b32 v{vAT}, {OOB}")
        A("v_cmp_eq_u32 vcc, 0, v0")
        A(f"v_mov_b32 v{vT}, 0")
        A(f"v_cndmask_b32 v{vAT}, v{vAT}, v{vT}, vcc")
        A("s_lshl_b32 s72, s32, 8")
        A(f"s_add_u32 s72, s72, {CNT_OFF}")
        A(f"s_mov_b32 s73, {OOB}")
        A("s_mov_b32 s74, 0")

    vTK, vZ, vOne = 56, 57, 58
    if ldyn:
        assert not dyn
        A("s_lshl_b32 s72, s33, 19")
        A(f"v_mov_b32 v{vZ}, 0")
        A(f"v_mov_b32 v{vOne}, 1")

    def req_ticket():
        A("s_mov_b64 exec, 1")
        A(f"ds_add_rtn_u32 v{vTK}, v{vZ}, v{vOne} offset:{L_FLAG+8}")
        A("s_mov_b64 exec, -1")

    def slot_regs(slot):
        return RB + 32 * slot

    def loads(slot):
        b = slot_regs(slot)
        for kk in range(4):
            A(f"buffer_load_dwordx4 {vr(b+4*kk,4)}, v{vK}, s[40:43], s{SOFF+slot} offen offset:{64*kk}{kp}")
        for u in range(4):
            A(f"buffer_load_dwordx4 {vr(b+16+4*u,4)}, v{vV}, s[44:47], s{SOFF+slot} offen offset:{1024*u}{kp}")

    def issue_static(slot):
        A(f"s_mov_b32 s{SOFF+slot}, s56")
        A("s_add_u32 s56, s56, 16384")
        A("s_add_u32 s57, s57, 1")
        loads(slot)
        if dyn:
            if dumload:
                A(f"buffer_load_dword v{TK+slot}, v{vAT}, s[36:39], s73 offen")
            else:
                A(f"buffer_atomic_add v{TK+slot}, v{vAT}, s[36:39], s73 offen {apol}")

    iuid = [0]

    def issue(slot, tkslot):
        iuid[0] += 1
        u = iuid[0]
        if ldyn:
            A("s_waitcnt lgkmcnt(0)")
            A(f"v_readfirstlane_b32 s58, v{vTK}")
            A("s_lshl_b32 s59, s58, 12")
            A("s_add_u32 s59, s59, s72")
            A("s_cmp_lt_u32 s58, 128")
            A(f"s_cselect_b32 s{SOFF+slot}, s59, {OOB}")
            loads(slot)
            req_ticket()
            return
        if not dyn:
            A(f"s_cmp_lt_u32 s57, {NSTAT}")
            A(f"s_cselect_b32 s{SOFF+slot}, s56, {OOB}")
            A("s_add_u32 s56, s56, 16384")
            A("s_add_u32 s57, s57, 1")
            loads(slot)
            return
        A(f"s_cmp_lt_u32 s57, {NSTAT}")
        A(f"s_cbranch_scc1 L_IS_ST_{u}")
        A(f"v_readfirstlane_b32 s58, v{TK+slot}")
        A("s_sub_u32 s58, s58, s75")
        A("s_lshl_b32 s59, s58, 12")
        A(f"s_add_u32 s59, s59, {NSTAT*131072}")
        A(f"s_cmp_ge_u32 s58, {NDYN}")
        A("s_cselect_b32 s74, 1, s74")
        A("s_cmp_eq_u32 s74, 0")
        A(f"s_cselect_b32 s{SOFF+slot}, s59, {OOB}")
        A(f"s_branch L_IS_GO_{u}")
        A(f"L_IS_ST_{u}:")
        A(f"s_mov_b32 s{SOFF+slot}, s56")
        A("s_add_u32 s56, s56, 16384")
        A(f"L_IS_GO_{u}:")
        loads(slot)
        A(f"s_cmp_ge_u32 s57, {NSTAT-DIST}")
        A(f"s_cselect_b32 s73, s72, {OOB}")
        A("s_cmp_eq_u32 s74, 0")
        A(f"s_cselect_b32 s73, s73, {OOB}")
        A("s_add_u32 s57, s57, 1")
        if dumload:
            A(f"s_cmp_ge_u32 s73, {OOB}")
            A(f"s_cbranch_scc1 L_IS_DUM_{u}")
        A(f"v_mov_b32 v{TK+tkslot}, 1")
        A(f"buffer_atomic_add v{TK+tkslot}, v{vAT}, s[36:39], s73 offen {apol}")
        if dumload:
            A(f"s_branch L_IS_END_{u}")
            A(f"L_IS_DUM_{u}:")
            A(f"buffer_load_dword v{TK+tkslot}, v{vAT}, s[36:39], s73 offen")
            A(f"L_IS_END_{u}:")

    if diag >= 2:
        A("v_mov_b32 v63, 0")
        A("s_mov_b32 m0, 0")
        A("s_mov_b32 s76, 0")
    A("s_barrier")
    stamp(0, 52)
    stamp(6, 52, entry=True)
    for k in range(min(DS, NP)):
        issue_static(k)
    sel_masks(MKS, 0, vT, vT2, True)
    A(f"v_mov_b32 v{vM}, 0xff800000")
    A(f"v_mov_b32 v{vL}, 0")
    for r in range(4):
        A(f"v_mov_b32 v{DO+r}, 0")
    A("v_lshlrev_b32 v6, 4, v4")
    A("s_mov_b32 s81, 0")
    for k in range(DS, NP):
        A("s_cmp_lg_u32 s81, 0")
        A(f"s_cbranch_scc1 L_FILL_{k}")
        A(f"s_waitcnt vmcnt({PER*(DS-1)})")
        read_flag(vT, 81)
        A(f"L_FILL_{k}:")
        issue_static(k)
    stamp(1, 52)
    wait_flag("L_S_QW", vT, 81)
    for kk in range(4):
        A(f"ds_read_b128 {vr(AQ+4*kk,4)}, v6 offset:{L_Q+64*kk}")
    if dyn:
        A(f"v_mov_b32 v{vT}, 0")
        A(f"ds_read_b32 v{vT}, v{vT} offset:{L_FLAG+4}")
    A("s_waitcnt lgkmcnt(0)")
    if dyn:
        A(f"v_readfirstlane_b32 s75, v{vT}")
    if ldyn:
        req_ticket()
    stamp(2, 52)

    uid = [0]

    def step(slot, wait, issue_slot, tkslot=None):
        uid[0] += 1
        u = uid[0]
        b = slot_regs(slot)
        A(f"s_cmp_ge_u32 s{SOFF+slot}, {OOB}")
        A("s_cbranch_scc1 L_SDONE")
        A(f"s_waitcnt vmcnt({wait})")
        if diag >= 2:
            A("s_waitcnt lgkmcnt(0)")
            A("v_writelane_b32 v63, s76, m0")
            A("s_memrealtime s[76:77]")
            A("s_add_u32 m0, m0, 1")
        if issue_slot is not None:
            issue(issue_slot, tkslot)
        if nocomp:
            for i in range(8):
                A(f"v_xor_b32 v{vL}, v{vL}, v{b+4*i}")
            return
        for kk in range(4):
            c = "0" if kk == 0 else vr(DSC, 4)
            A(f"v_mfma_f32_16x16x32_bf16 {vr(DSC,4)}, {vr(AQ+4*kk,4)}, {vr(b+4*kk,4)}, {c}")
        rbf(vT, DSC)
        A(f"v_mul_f32 v{vT}, {fl(SCALE)}, v{vT}")
        rbf(vS, vT)
        A(f"v_cmp_gt_f32 vcc, v{vS}, v{vM}")
        A(f"s_cbranch_vccz L_NORESC_{u}")
        A(f"v_max_f32_dpp v{vT}, v{vS}, v{vS} row_ror:8 row_mask:0xf bank_mask:0xf")
        for s in (4, 2, 1):
            A(f"v_max_f32_dpp v{vT}, v{vT}, v{vT} row_ror:{s} row_mask:0xf bank_mask:0xf")
        A(f"v_max_f32 v{vT}, v{vT}, v{vM}")
        A(f"v_sub_f32 v{vT2}, v{vM}, v{vT}")
        A(f"v_mul_f32 v{vT2}, {fl(LOG2E)}, v{vT2}")
        A(f"v_exp_f32 v{vT2}, v{vT2}")
        A(f"v_mov_b32 v{vM}, v{vT}")
        A(f"v_mul_f32 v{vL}, v{vL}, v{vT2}")
        for r in range(4):
            A(f"v_mul_f32 v{DO+r}, v{DO+r}, v{vT2}")
        A(f"L_NORESC_{u}:")
        A(f"v_sub_f32 v{vT}, v{vS}, v{vM}")
        A(f"v_mul_f32 v{vT}, {fl(LOG2E)}, v{vT}")
        A(f"v_exp_f32 v{vP}, v{vT}")
        A(f"v_cvt_pk_bf16_f32 v{vP2s}, v{vP}, v{vP}")
        A(f"v_cvt_pk_bf16_f32 v{vP2}, v{vP}, v{vP}")
        A(f"v_add_f32 v{vL}, v{vL}, v{vP}")
        A(f"v_mov_b32_dpp v{vP2}, v{vP2s} row_shl:1 row_mask:0x2 bank_mask:0xf")
        A(f"v_mov_b32_dpp v{vP2}, v{vP2s} row_shl:2 row_mask:0x4 bank_mask:0xf")
        A(f"v_mov_b32_dpp v{vP2}, v{vP2s} row_shl:3 row_mask:0x8 bank_mask:0xf")

        def ands(uu):
            a = PA + 4 * (uu & 1)
            for r in range(4):
                A(f"v_and_b32_dpp v{a+r}, v{vP2}, v{MKS+r} row_newbcast:{4*uu} row_mask:0xf bank_mask:0xf")

        def pv(uu):
            a = PA + 4 * (uu & 1)
            A(f"v_mfma_f32_16x16x32_bf16 {vr(DO,4)}, {vr(a,4)}, {vr(b+16+4*uu,4)}, {vr(DO,4)}")
        ands(0); ands(1); pv(0); ands(2); pv(1); ands(3); pv(2); pv(3)

    npeel = NP - DIST - 1 if DIST < NP else 0
    RS = DIST + 1
    assert RS <= NP
    first = NP - RS
    for n in range(first):
        step(n, PER * (NP - 1 - n), None)
    step(first, PER * (RS - 1), None)
    assert NSTAT - DIST >= NP
    A("L_SLOOP:")
    for i in range(RS):
        cons = first + (i + 1) % RS
        free = first + i % RS
        tks = first + (i - 1) % RS
        step(cons, PER * (DIST - 1), free, tks)
    A("s_branch L_SLOOP")

    A("L_SDONE:")
    stamp(3, 52)
    if diag >= 2:
        A("s_waitcnt vmcnt(0) lgkmcnt(0)")
        A("v_writelane_b32 v63, s76, m0")
        A("s_lshl_b32 s58, s2, 2")
        A("s_add_u32 s58, s58, s3")
        A("s_sub_u32 s58, s58, 4")
        A("s_lshl_b32 s58, s58, 8")
        A(f"s_add_u32 s58, s58, {TS2_OFF}")
        A("v_lshlrev_b32 v62, 2, v0")
        A("buffer_store_dword v63, v62, s[36:39], s58 offen")
    row_sum(vL)
    A("v_lshlrev_b32 v6, 5, v5")
    A("v_lshl_add_u32 v6, v4, 4, v6")
    A("s_sub_u32 s58, s3, 4")
    A("s_mul_i32 s58, s58, 576")
    A("v_add_u32 v6, s58, v6")
    A("v_mov_b32 v7, s58")
    A(f"v_mov_b32 v52, v{vM}")
    A(f"v_mov_b32 v53, v{vL}")
    A("s_mov_b32 exec_hi, 0")
    A(f"ds_write_b128 v6, {vr(DO,4)} offset:{L_PART}")
    A("s_mov_b64 exec, 1")
    A(f"ds_write_b64 v7, v[52:53] offset:{L_PART+512}")
    A("s_mov_b64 exec, -1")
    A("s_waitcnt lgkmcnt(0)")
    A("s_barrier")
    stamp(4)
    flush_stamps()
    A("L_END:")
    A("s_endpgm")

    L = [x for x in L if x is not None]
    out, nins = hz.fix(L)
    out.append('.section .rodata,"a"')
    out.append(".p2align 6")
    out.append(f".amdhsa_kernel {NAME}")
    out.append("  .amdhsa_next_free_vgpr 256")
    out.append("  .amdhsa_next_free_sgpr 102")
    out.append("  .amdhsa_accum_offset 256")
    out.append("  .amdhsa_group_segment_fixed_size 0")
    out.append("  .amdhsa_kernarg_size 104")
    out.append("  .amdhsa_user_sgpr_count 2")
    out.append("  .amdhsa_user_sgpr_kernarg_segment_ptr 1")
    out.append("  .amdhsa_system_sgpr_workgroup_id_x 1")
    out.append(".end_amdhsa_kernel")
    return "\n".join(out) + "\n"


def parse_spec(spec):
    kw = {}
    if spec:
        for it in spec.split(","):
            k, v = it.split("=")
            try:
                v = int(v)
            except ValueError:
                v = v.replace("+", " ")
            kw[k] = v
    return kw


if __name__ == "__main__":
    spec = sys.argv[1] if len(sys.argv) > 1 else ""
    sys.stdout.write(gen(**parse_spec(spec)))
```

```python
import sys, struct, os
sys.path.insert(0, os.path.dirname(os.path.abspath(__file__)))
import hz

NAME = "parallel_sum__gqa_block_cached__mixer_channel_mlp__decode_kernel"

WS_SIZE = 0x400000
R_OFF = 0x0
QP_OFF = 0x10000
ZP_OFF = 0x30000
OP_OFF = 0x40000
ML_OFF = 0x60000
AP_OFF = 0x70000
BP_OFF = 0xC0000
TS_OFF = 0x180000
TS2_OFF = 0x200000
TAG0 = 0x5BD1E995
TAG1 = 0x2545F491

L_XN2 = 0
L_Y2 = 2560
L_Q = 5120
L_PART = 5376
L_HH2 = 7680
L_FLAG = 7936
LDS_SIZE = 8192

OOB = 0x40000000
POLL_MAX = 200000
NFIN = 80


def f2u(x):
    return struct.unpack("<I", struct.pack("<f", x))[0]


def fl(x):
    return "0x%08x" % f2u(x)


LOG2E = 1.4426950408889634
SCALE = 128 ** -0.5


def gen(NP=6, DIST=2, DS=2, kpol="nt", wpol="nt", diag=0, header=True, b0early=0, pubwait=3,
        noq=0, noh=0, h1off=0, h2off=0, notail=0, sprio=0, hprio=0, qprio=0):
    L = []
    A = L.append

    def C(s):
        L.append("; " + s)

    PER = 8
    kp = (" " + kpol) if kpol else ""
    wp = (" " + wpol) if wpol else ""

    def srd(base, lo, hi, size):
        A(f"s_mov_b32 s{base}, s{lo}")
        A(f"s_mov_b32 s{base+1}, s{hi}")
        A(f"s_mov_b32 s{base+2}, {size}")
        A(f"s_mov_b32 s{base+3}, 0x20000")

    def vr(a, n):
        return f"v[{a}:{a+n-1}]"

    DPPM = "row_mask:0xf bank_mask:0xf"

    def rbf(dst, src):
        A(f"v_cvt_pk_bf16_f32 v{dst}, v{src}, v{src}")
        A(f"v_and_b32 v{dst}, 0xffff0000, v{dst}")

    def row_sum(v, steps=(8, 4, 2, 1), op="v_add_f32"):
        for s in steps:
            A(f"{op}_dpp v{v}, v{v}, v{v} row_ror:{s} {DPPM}")

    def oct_reduce(regs, op="v_add_f32"):
        for mod in ("quad_perm:[1,0,3,2]", "quad_perm:[2,3,0,1]", "row_half_mirror"):
            for v in regs:
                A(f"{op}_dpp v{v}, v{v}, v{v} {mod} {DPPM}")

    def swap_add(v, t, which, op="v_add_f32"):
        A(f"v_mov_b32 v{t}, v{v}")
        A(f"v_permlane{which}_swap_b32 v{v}, v{t}")
        A(f"{op} v{v}, v{v}, v{t}")

    def swap_add_n(regs, tmps, which):
        for v, t in zip(regs, tmps):
            A(f"v_mov_b32 v{t}, v{v}")
        for v, t in zip(regs, tmps):
            A(f"v_permlane{which}_swap_b32 v{v}, v{t}")
        for v, t in zip(regs, tmps):
            A(f"v_add_f32 v{v}, v{v}, v{t}")

    def pair_sum(regs, tmps):
        for v, t in zip(regs, tmps):
            A(f"v_mov_b32 v{t}, v{v}")
        for v, t in zip(regs, tmps):
            A(f"v_permlane32_swap_b32 v{v}, v{t}")
        for v, t in zip(regs, tmps):
            A(f"v_add_f32_dpp v{v}, v{t}, v{v} row_ror:8 {DPPM}")

    def wave_sum(v, t):
        row_sum(v)
        swap_add(v, t, 16)
        swap_add(v, t, 32)

    def stamp(slot):
        if diag:
            A(f"s_memrealtime s[{84+2*slot}:{85+2*slot}]")

    def flush_stamps(sv=248):
        if not diag:
            return
        A("s_mov_b64 exec, -1")
        A("s_waitcnt vmcnt(0) lgkmcnt(0)")
        A(f"s_lshl_b32 s82, s2, 9")
        A(f"s_lshl_b32 s83, s3, 6")
        A("s_add_u32 s82, s82, s83")
        A(f"s_add_u32 s82, s82, {TS_OFF}")
        A(f"v_mov_b32 v{sv+4}, 0")
        A("s_mov_b64 exec, 1")
        for k in range(4):
            for r in range(4):
                A(f"v_mov_b32 v{sv+r}, s{84+4*k+r}")
            A(f"buffer_store_dwordx4 v[{sv}:{sv+3}], v{sv+4}, s[36:39], s82 offen offset:{16*k}")
            A("s_nop 1")
        A("s_mov_b64 exec, -1")

    def endp():
        flush_stamps()
        A("s_endpgm")

    def ln(xin, tmp):
        t0, t1, t2, t3, t4, t5 = [tmp + i for i in range(6)]
        A(f"v_add_f32 v{t0}, v{xin}, v{xin+1}")
        for i in range(2, 10):
            A(f"v_add_f32 v{t0}, v{t0}, v{xin+i}")
        wave_sum(t0, t1)
        A(f"v_mul_f32 v{t0}, {fl(1.0/640.0)}, v{t0}")
        A(f"v_sub_f32 v{t2}, v{xin}, v{t0}")
        A(f"v_mul_f32 v{t3}, v{t2}, v{t2}")
        for i in range(1, 10):
            A(f"v_sub_f32 v{t2}, v{xin+i}, v{t0}")
            A(f"v_fmac_f32 v{t3}, v{t2}, v{t2}")
        wave_sum(t3, t1)
        A(f"v_mul_f32 v{t3}, {fl(1.0/640.0)}, v{t3}")
        rbf(t3, t3)
        A(f"v_add_f32 v{t3}, {fl(1e-5)}, v{t3}")
        rbf(t3, t3)
        A(f"v_sqrt_f32 v{t3}, v{t3}")
        rbf(t0, t0)
        rbf(t3, t3)
        A(f"v_rcp_f32 v{t3}, v{t3}")
        for i in range(0, 10, 2):
            A(f"v_sub_f32 v{t1}, v{xin+i}, v{t0}")
            A(f"v_sub_f32 v{t2}, v{xin+i+1}, v{t0}")
            A(f"v_cvt_pk_bf16_f32 v{t4}, v{t1}, v{t2}")
            A(f"v_lshlrev_b32 v{t1}, 16, v{t4}")
            A(f"v_and_b32 v{t2}, 0xffff0000, v{t4}")
            A(f"v_mul_f32 v{t1}, v{t1}, v{t3}")
            A(f"v_mul_f32 v{t2}, v{t2}, v{t3}")
            A(f"v_cvt_pk_bf16_f32 v{xin+i}, v{t1}, v{t1}")
            A(f"v_cvt_pk_bf16_f32 v{xin+i+1}, v{t2}, v{t2}")

    def unpack_pairs(src, dst, n):
        for k in range(n):
            A(f"v_lshlrev_b32 v{dst+2*k}, 16, v{src+k}")
            A(f"v_and_b32 v{dst+2*k+1}, 0xffff0000, v{src+k}")

    def sel_masks(m, lane, t0, t1, eight_rows):
        A(f"v_and_b32 v{t0}, 1, v{lane}")
        A(f"v_cmp_eq_u32 vcc, 1, v{t0}")
        A(f"v_mov_b32 v{t0}, 0x0000ffff")
        A(f"v_mov_b32 v{t1}, 0xffff0000")
        A(f"v_cndmask_b32 v{t0}, v{t0}, v{t1}, vcc")
        A(f"v_and_b32 v{t1}, {15 if eight_rows else 7}, v{lane}")
        A(f"v_lshrrev_b32 v{t1}, 1, v{t1}")
        for r in range(4):
            A(f"v_cmp_eq_u32 vcc, {r}, v{t1}")
            A(f"v_cndmask_b32 v{m+r}, 0, v{t0}, vcc")

    def sel_gemv(n, vals, W, aset, masks, D, D2, tmp, waits=None):
        for t in range(n):
            if waits and t in waits:
                A(f"s_waitcnt vmcnt({waits[t]})")
            a = aset + 4 * (t & 1)
            d = D if (t & 1) == 0 else D2
            for r in range(4):
                A(f"v_and_b32 v{a+r}, v{vals+t}, v{masks+r}")
            c = "0" if t < 2 else vr(d, 4)
            A(f"v_mfma_f32_16x16x32_bf16 {vr(d,4)}, {vr(a,4)}, {vr(W+4*t,4)}, {c}")
        for r in range(4):
            A(f"v_add_f32 v{D+r}, v{D+r}, v{D2+r}")

    def tagcheck(acc, g, first):
        if first:
            A(f"v_xor_b32 v{acc}, s30, v{g+1}")
        else:
            A(f"v_bitop3_b32 v{acc}, v{acc}, v{g+1}, s30 bitop3:0xf6")
        A(f"v_bitop3_b32 v{acc}, v{acc}, v{g+3}, s31 bitop3:0xf6")

    def pack_tags(g, vff):
        for r in range(4):
            A(f"v_bfi_b32 v{g+r}, v{vff}, s{72+r}, v{g+r}")

    def strip_tags(acc, g, first):
        for r in range(4):
            A(f"v_xor_b32 v{g+r}, s{72+r}, v{g+r}")
        if first:
            A(f"v_or3_b32 v{acc}, v{g}, v{g+1}, v{g+2}")
            A(f"v_or_b32 v{acc}, v{acc}, v{g+3}")
        else:
            A(f"v_or3_b32 v{acc}, v{acc}, v{g}, v{g+1}")
            A(f"v_or3_b32 v{acc}, v{acc}, v{g+2}, v{g+3}")

    def poll_branch(label):
        A(f"s_cbranch_vccz {label}_OK")
        A("s_add_u32 s80, s80, 1")
        A(f"s_cmp_lt_u32 s80, {POLL_MAX}")
        A(f"s_cbranch_scc1 {label}")
        A(f"{label}_OK:")

    def read_flag(vt, sdst):
        A(f"v_mov_b32 v{vt}, 0")
        A(f"ds_read_b32 v{vt}, v{vt} offset:{L_FLAG}")
        A("s_waitcnt lgkmcnt(0)")
        A(f"v_readfirstlane_b32 s{sdst}, v{vt}")

    def wait_flag(label, vt=2, sdst=81):
        A("s_mov_b32 s82, 0")
        A(f"{label}:")
        read_flag(vt, sdst)
        A(f"s_cmp_lg_u32 s{sdst}, 0")
        A(f"s_cbranch_scc1 {label}_OK")
        A("s_add_u32 s82, s82, 1")
        A(f"s_cmp_lt_u32 s82, {POLL_MAX*16}")
        A(f"s_cbranch_scc1 {label}")
        A(f"{label}_OK:")

    def get_tags(compact=True):
        A("s_waitcnt lgkmcnt(0)")
        A(f"s_add_u32 s30, s30, {TAG0}")
        A(f"s_add_u32 s31, s31, {TAG1}")
        if compact:
            A("s_and_b32 s72, s30, 0xff")
            A("s_bfe_u32 s73, s30, 0x80008")
            A("s_bfe_u32 s74, s30, 0x80010")
            A("s_lshr_b32 s75, s30, 24")

    if header:
        hdr = open("parallel_sum__gqa_block_cached__mixer_channel_mlp__decode.s.ref").read().split("\n")
        for ln_ in hdr:
            if ln_.startswith("; @launch") or ln_.startswith(".amdgcn_target"):
                break
            if ln_.startswith("; Override") or ln_.startswith("; grid="):
                continue
            L.append(ln_)
    L.append(f"; @launch grid=(256,1,1) block=(512,1,1) lds={LDS_SIZE}")
    L.append('.amdgcn_target "amdgcn-amd-amdhsa--gfx950"')
    L.append(".text")
    L.append(f".globl {NAME}")
    L.append(".p2align 8")
    L.append(f".type {NAME},@function")
    L.append(f"{NAME}:")

    C("256 workgroups x 8 waves. waves 0..3 helpers, waves 4..7 stream K/V")
    if diag:
        A("s_memrealtime s[96:97]")
        for r in list(range(84, 96)) + [98, 99]:
            A(f"s_mov_b32 s{r}, 0x5a5a5a5a")
    A("s_cmp_ge_u32 s2, 256")
    A("s_cbranch_scc1 L_END")
    A("s_load_dwordx16 s[4:19], s[0:1], 0")
    A("s_load_dwordx8 s[20:27], s[0:1], 64")
    A("s_load_dwordx2 s[28:29], s[0:1], 96")
    A("v_lshrrev_b32 v1, 6, v0")
    A("v_and_b32 v0, 63, v0")
    A("v_readfirstlane_b32 s3, v1")
    A("s_lshr_b32 s32, s2, 3")
    A("s_and_b32 s33, s2, 7")
    A("v_lshrrev_b32 v4, 4, v0")
    A("v_and_b32 v5, 15, v0")
    A("s_waitcnt lgkmcnt(0)")
    srd(36, 28, 29, WS_SIZE)
    A("s_cmp_ge_u32 s3, 4")
    A("s_cbranch_scc1 L_STREAM")
    A(f"s_load_dwordx2 s[30:31], s[28:29], {R_OFF}")
    A("s_mov_b32 s80, 0")
    A("s_cmp_eq_u32 s3, 1")
    A("s_cbranch_scc1 L_H1")
    A("s_cmp_eq_u32 s3, 2")
    A("s_cbranch_scc1 L_H2")
    A("s_cmp_eq_u32 s3, 3")
    A("s_cbranch_scc1 L_FIN")

    C("---- H0 ----")
    stamp(4)
    X = 10
    XF = 16
    T = 26
    MK = 32
    AS = 36
    D = 44
    D2 = 48
    VAL = 52
    G = 72
    W = 100
    srd(40, 4, 5, 1280)
    srd(44, 10, 11, 640 * 8192)
    A("v_lshlrev_b32 v2, 2, v0")
    for k in range(5):
        A(f"buffer_load_dword v{X+k}, v2, s[40:43], 0 offen offset:{256*k}")
    A("v_lshrrev_b32 v6, 3, v0")
    A("v_and_b32 v7, 7, v0")
    A(f"v_mul_u32_u24 v3, {20*8192}, v6")
    A("v_lshl_add_u32 v3, v7, 4, v3")
    if noq:
        A("s_barrier")
        A("v_mov_b32 v7, 0")
        A("v_mov_b32 v8, 1")
        A(f"ds_write_b32 v7, v8 offset:{L_FLAG}")
        endp()
    if qprio:
        A(f"s_setprio {qprio}")
    A("s_lshr_b32 s58, s33, 1")
    A("s_and_b32 s59, s33, 1")
    A(f"s_mul_i32 s56, s58, {160*8192}")
    A("s_lshl_b32 s57, s32, 8")
    A("s_add_u32 s56, s56, s57")
    A("s_lshl_b32 s57, s59, 7")
    A("s_add_u32 s56, s56, s57")
    for t in range(20):
        A(f"buffer_load_dwordx4 {vr(W+4*t,4)}, v3, s[44:47], s56 offen{wp}")
        if t < 19:
            A("s_add_u32 s56, s56, 8192")
    stamp(5)
    A("s_barrier")
    stamp(0)
    sel_masks(MK, 0, T, T + 1, False)
    A("v_mul_u32_u24 v7, 80, v6")
    A("v_lshlrev_b32 v6, 3, v0")
    A(f"s_mul_i32 s57, s58, 640")
    A("v_add_u32 v7, s57, v7")
    A("s_waitcnt vmcnt(20)")
    unpack_pairs(X, XF, 5)
    ln(XF, T)
    for k in range(5):
        A(f"ds_write_b64 v6, {vr(XF+2*k,2)} offset:{L_XN2+512*k}")
    A("s_waitcnt lgkmcnt(0)")
    for i in range(5):
        A(f"ds_read_b128 {vr(VAL+4*i,4)}, v7 offset:{L_XN2+16*i}")
    get_tags(False)
    stamp(1)
    sel_gemv(20, VAL, W, AS, MK, D, D2, T, waits={0: 15, 5: 10, 10: 5, 15: 0})
    pair_sum([D, D + 1, D + 2, D + 3], [T, T + 1, T + 2, T + 3])
    A(f"v_mov_b32_dpp v{D}, v{D+2} row_ror:8 row_mask:0xf bank_mask:0xc")
    A(f"v_mov_b32_dpp v{D+1}, v{D+3} row_ror:8 row_mask:0xf bank_mask:0xc")
    A("v_and_b32 v8, 7, v5")
    A("v_lshlrev_b32 v8, 6, v8")
    A("v_lshl_add_u32 v8, v4, 5, v8")
    A("v_lshrrev_b32 v9, 3, v5")
    A("v_lshl_add_u32 v8, v9, 4, v8")
    A("s_lshl_b32 s57, s32, 12")
    A("s_lshl_b32 s58, s58, 10")
    A("s_add_u32 s57, s57, s58")
    A("s_lshl_b32 s59, s59, 9")
    A("s_add_u32 s57, s57, s59")
    A(f"s_add_u32 s57, s57, {QP_OFF}")
    A(f"v_mov_b32 v{G}, v{D}")
    A(f"v_mov_b32 v{G+1}, s30")
    A(f"v_mov_b32 v{G+2}, v{D+1}")
    A(f"v_mov_b32 v{G+3}, s31")
    A("s_mov_b32 exec_hi, 0")
    A(f"buffer_store_dwordx4 {vr(G,4)}, v8, s[36:39], s57 offen sc1")
    A("s_mov_b64 exec, -1")
    stamp(2)
    A("v_lshlrev_b32 v9, 4, v0")
    A("s_lshl_b32 s58, s32, 12")
    A(f"s_add_u32 s58, s58, {QP_OFF}")
    if pubwait & 1:
        A("s_waitcnt vmcnt(0)")
    else:
        A("s_nop 1")
    A("L_H0_POLL:")
    for k in range(4):
        A(f"buffer_load_dwordx4 {vr(G+4*k,4)}, v9, s[36:39], s58 offen offset:{1024*k} sc1")
    A("s_waitcnt vmcnt(0)")
    for k in range(4):
        tagcheck(T, G + 4 * k, k == 0)
    A(f"v_cmp_ne_u32 vcc, 0, v{T}")
    poll_branch("L_H0_POLL")
    A(f"v_add_f32 v{T}, v{G}, v{G+4}")
    A(f"v_add_f32 v{T+1}, v{G+2}, v{G+6}")
    for k in range(2, 4):
        A(f"v_add_f32 v{T}, v{T}, v{G+4*k}")
        A(f"v_add_f32 v{T+1}, v{T+1}, v{G+4*k+2}")
    A(f"v_cvt_pk_bf16_f32 v{T}, v{T}, v{T+1}")
    A("v_lshlrev_b32 v6, 2, v0")
    A(f"ds_write_b32 v6, v{T} offset:{L_Q}")
    A("v_mov_b32 v7, 0")
    A("v_mov_b32 v8, 1")
    A("s_waitcnt lgkmcnt(0)")
    A(f"ds_write_b32 v7, v8 offset:{L_FLAG}")
    stamp(3)
    endp()

    C("---- H1 ----")
    A("L_H1:")
    if hprio:
        A(f"s_setprio {hprio}")
    A("v_mov_b32 v2, 0")
    A(f"ds_write_b32 v2, v2 offset:{L_FLAG}")
    A(f"v_mov_b32 v3, {4*NP}")
    A(f"ds_write_b32 v2, v3 offset:{L_FLAG+8}")
    A("s_waitcnt lgkmcnt(0)")
    A("s_barrier")
    if noh or h1off:
        endp()
    A("s_lshr_b32 s57, s2, 6")
    A("s_and_b32 s35, s32, 7")
    A("s_mul_i32 s34, s33, 3")
    A("s_add_u32 s34, s34, s57")
    A("s_cmp_lt_u32 s57, 3")
    A("s_cbranch_scc1 L_H1_MLP")
    A("s_add_u32 s34, s33, 24")
    A("s_cmp_ge_u32 s33, 3")
    A("s_cbranch_scc1 L_H1_EXIT")
    A("L_H1_MLP:")
    get_tags()
    wait_flag("L_H1_QW")
    stamp(0)
    W1 = 100
    W2 = 140
    B1 = 14
    VFF = 9
    srd(44, 16, 17, 640 * 3456)
    srd(48, 20, 21, 1728 * 1280)
    srd(52, 18, 19, 3456)
    A("v_lshlrev_b32 v6, 3, v0")
    for k in range(5):
        A(f"ds_read_b64 {vr(XF+2*k,2)}, v6 offset:{L_XN2+512*k}")
    A("v_bfe_u32 v10, v0, 3, 1")
    A("v_and_b32 v7, 7, v0")
    A("v_mul_u32_u24 v8, 20, v4")
    A("v_mad_u32_u24 v8, v10, 10, v8")
    A(f"v_mul_u32_u24 v3, 3456, v8")
    A("v_lshl_add_u32 v3, v7, 4, v3")
    A(f"s_mul_i32 s56, s35, {80*3456}")
    A("s_lshl_b32 s57, s34, 7")
    A("s_add_u32 s56, s56, s57")
    for t in range(10):
        A(f"buffer_load_dwordx4 {vr(W1+4*t,4)}, v3, s[44:47], s56 offen{wp}")
        if t < 9:
            A("s_add_u32 s56, s56, 3456")
    A("v_lshlrev_b32 v11, 3, v5")
    A(f"buffer_load_dwordx2 {vr(B1,2)}, v11, s[52:55], s57 offen")
    A(f"v_mul_u32_u24 v3, {16*1280}, v4")
    A("v_lshl_add_u32 v3, v5, 4, v3")
    A("v_cmp_gt_u32 vcc, 10, v5")
    A(f"v_mov_b32 v11, {OOB}")
    A("v_cndmask_b32 v3, v11, v3, vcc")
    A(f"s_mul_i32 s56, s34, {64*1280}")
    A("s_mul_i32 s57, s35, 160")
    A("s_add_u32 s56, s56, s57")
    for t in range(16):
        A(f"buffer_load_dwordx4 {vr(W2+4*t,4)}, v3, s[48:51], s56 offen{wp}")
        if t < 15:
            A("s_add_u32 s56, s56, 1280")
    sel_masks(MK, 0, T, T + 1, False)
    A("s_mul_i32 s57, s35, 320")
    A("v_lshlrev_b32 v8, 2, v8")
    A("v_add_u32 v8, s57, v8")
    A(f"v_mov_b32 v{VFF}, 0xff")
    A("s_waitcnt lgkmcnt(0)")
    for i in range(10):
        A(f"v_and_b32 v{XF+i}, 0xffff0000, v{XF+i}")
    ln(XF, T)
    for k in range(5):
        A(f"ds_write_b64 v6, {vr(XF+2*k,2)} offset:{L_Y2+512*k}")
    A("s_waitcnt lgkmcnt(0)")
    for i in range(5):
        A(f"ds_read_b64 {vr(VAL+2*i,2)}, v8 offset:{L_Y2+8*i}")
    A("s_waitcnt lgkmcnt(0)")
    stamp(1)
    A("s_waitcnt vmcnt(17)")
    stamp(2)
    sel_gemv(10, VAL, W1, AS, MK, D, D2, T)
    pair_sum([D, D + 1, D + 2, D + 3], [T, T + 1, T + 2, T + 3])
    pack_tags(D, VFF)
    A("v_lshlrev_b32 v8, 5, v5")
    A("v_lshl_add_u32 v8, v4, 4, v8")
    A("s_lshl_b32 s57, s34, 3")
    A("s_add_u32 s57, s57, s35")
    A("s_lshl_b32 s57, s57, 8")
    A(f"s_add_u32 s57, s57, {ZP_OFF}")
    A("s_mov_b32 s60, 0x00ff00ff")
    A("s_mov_b32 s61, 0")
    A("s_mov_b64 exec, s[60:61]")
    A(f"buffer_store_dwordx4 {vr(D,4)}, v8, s[36:39], s57 offen sc1")
    A("s_mov_b64 exec, -1")
    stamp(3)
    A("v_lshlrev_b32 v10, 4, v0")
    A("s_lshl_b32 s58, s34, 11")
    A(f"s_add_u32 s58, s58, {ZP_OFF}")
    if pubwait & 2:
        A("s_waitcnt vmcnt(0)")
    A("L_H1_POLL:")
    for k in range(2):
        A(f"buffer_load_dwordx4 {vr(G+4*k,4)}, v10, s[36:39], s58 offen offset:{1024*k} sc1")
    A("s_waitcnt vmcnt(0)")
    strip_tags(T, G, True)
    strip_tags(T, G + 4, False)
    A(f"v_and_b32 v{T}, 0xff, v{T}")
    A(f"v_cmp_ne_u32 vcc, 0, v{T}")
    poll_branch("L_H1_POLL")
    stamp(7)
    Z = G
    for r in range(4):
        A(f"v_add_f32 v{Z+r}, v{Z+r}, v{G+4+r}")
    swap_add_n([Z + r for r in range(4)], [T + r for r in range(4)], 16)
    swap_add_n([Z + r for r in range(4)], [T + r for r in range(4)], 32)
    c1 = -2.0 * 0.7978845608028654 * LOG2E
    c2 = c1 * 0.044715
    A(f"s_mov_b32 s62, {fl(c2)}")
    for e in range(4):
        z = Z + e
        rbf(z, z)
        if (e & 1) == 0:
            A(f"v_lshlrev_b32 v{T+2}, 16, v{B1+(e>>1)}")
        else:
            A(f"v_and_b32 v{T+2}, 0xffff0000, v{B1+(e>>1)}")
        A(f"v_add_f32 v{z}, v{z}, v{T+2}")
        rbf(z, z)
        A(f"v_mul_f32 v{T+2}, v{z}, v{z}")
        A(f"v_mov_b32 v{T+3}, {fl(c1)}")
        A(f"v_fmac_f32 v{T+3}, s62, v{T+2}")
        A(f"v_mul_f32 v{T+3}, v{T+3}, v{z}")
        A(f"v_exp_f32 v{T+3}, v{T+3}")
        A(f"v_add_f32 v{T+3}, 1.0, v{T+3}")
        A(f"v_rcp_f32 v{T+3}, v{T+3}")
        A(f"v_mul_f32 v{z}, v{z}, v{T+3}")
        A(f"v_cvt_pk_bf16_f32 v{z}, v{z}, v{z}")
    A("v_lshlrev_b32 v6, 4, v5")
    A(f"ds_write_b128 v6, {vr(Z,4)} offset:{L_HH2}")
    A("v_lshlrev_b32 v7, 6, v4")
    A("s_waitcnt lgkmcnt(0)")
    for i in range(4):
        A(f"ds_read_b128 {vr(VAL+4*i,4)}, v7 offset:{L_HH2+16*i}")
    sel_masks(MK, 0, T + 2, T + 3, True)
    A("s_waitcnt lgkmcnt(0)")
    sel_gemv(16, VAL, W2, AS, MK, D, D2, T)
    pack_tags(D, VFF)
    A("s_lshl_b32 s57, s34, 3")
    A("s_add_u32 s57, s57, s35")
    A("s_mul_i32 s57, s57, 384")
    A(f"s_add_u32 s57, s57, {BP_OFF}")
    A("s_mov_b32 s60, 0x03ff03ff")
    A("s_mov_b32 s61, 0")
    A("s_mov_b64 exec, s[60:61]")
    A(f"buffer_store_dwordx4 {vr(D,4)}, v8, s[36:39], s57 offen sc1")
    A("s_mov_b64 exec, -1")
    stamp(4)
    A("L_H1_EXIT:")
    endp()

    C("---- final consumer: 8 output columns ----")
    A("L_FIN:")
    A(f"s_cmp_ge_u32 s2, {NFIN}")
    A("s_cbranch_scc1 L_END")
    if noh or notail:
        A("s_branch L_END")
    XP = 10; B2P = 12; BV = 14
    FA = 20
    FB = 36
    FT = 40
    srd(40, 4, 5, 1280)
    srd(44, 22, 23, 1280)
    srd(48, 24, 25, 1280)
    A("s_lshl_b32 s57, s2, 4")
    A("v_and_b32 v6, 1, v0")
    A("v_lshlrev_b32 v2, 3, v6")
    A(f"buffer_load_dwordx2 {vr(XP,2)}, v2, s[40:43], s57 offen")
    A(f"buffer_load_dwordx2 {vr(B2P,2)}, v2, s[44:47], s57 offen")
    A("v_lshrrev_b32 v7, 1, v0")
    A("s_mul_i32 s58, s2, 6554")
    A("s_lshr_b32 s58, s58, 16")
    A("s_mul_i32 s59, s58, 10")
    A("s_sub_u32 s59, s2, s59")
    A("s_mul_i32 s58, s58, 384")
    A("s_lshl_b32 s59, s59, 5")
    A("s_add_u32 s58, s58, s59")
    A(f"s_add_u32 s58, s58, {BP_OFF}")
    A("v_mul_u32_u24 v3, 3072, v7")
    A("v_lshl_add_u32 v3, v6, 4, v3")
    A("s_cmp_ge_u32 s2, 40")
    A("s_cselect_b32 s60, 1, 0")
    A("s_mul_i32 s61, s60, 40")
    A("s_sub_u32 s61, s2, s61")
    A("s_lshl_b32 s61, s61, 5")
    A("s_mul_i32 s60, s60, 1280")
    A("s_add_u32 s60, s60, s61")
    A(f"s_add_u32 s60, s60, {AP_OFF}")
    for k in range(1, 4):
        A(f"s_add_u32 s{60+k}, s60, {k*32*2560}")
    A("v_mul_u32_u24 v9, 2560, v7")
    A("v_lshl_add_u32 v9, v6, 4, v9")
    A("s_barrier")
    get_tags()
    for r in range(4):
        A(f"v_mov_b32 v{FB+r}, 0")
    A("s_mov_b32 s64, -1")
    A("s_mov_b32 s65, 0x003fffff")
    stamp(4)
    A("s_barrier")
    stamp(0)

    def lanes_sum(regs, tmps):
        for s_ in (2, 4, 8):
            for v in regs:
                A(f"v_add_f32_dpp v{v}, v{v}, v{v} row_ror:{s_} {DPPM}")
        swap_add_n(regs, tmps, 16)
        swap_add_n(regs, tmps, 32)

    A("s_mov_b64 exec, s[64:65]")
    A("L_FIN_POLLB:")
    A(f"buffer_load_dwordx4 {vr(FB,4)}, v3, s[36:39], s58 offen sc1")
    A("s_waitcnt vmcnt(0)")
    strip_tags(FT, FB, True)
    A(f"v_and_b32 v{FT}, 0xff, v{FT}")
    A(f"v_cmp_ne_u32 vcc, 0, v{FT}")
    poll_branch("L_FIN_POLLB")
    A("s_mov_b64 exec, -1")
    stamp(1)
    for k in range(4):
        A(f"buffer_load_dwordx4 {vr(FA+4*k,4)}, v9, s[36:39], s{60+k} offen sc1")
    lanes_sum([FB + r for r in range(4)], [FT + r for r in range(4)])
    for e in range(4):
        rbf(FB + e, FB + e)
        if (e & 1) == 0:
            A(f"v_lshlrev_b32 v{FT}, 16, v{B2P+(e>>1)}")
        else:
            A(f"v_and_b32 v{FT}, 0xffff0000, v{B2P+(e>>1)}")
        A(f"v_add_f32 v{FB+e}, v{FB+e}, v{FT}")
        rbf(BV + e, FB + e)
    XFP = FB
    for e in range(4):
        if (e & 1) == 0:
            A(f"v_lshlrev_b32 v{XFP+e}, 16, v{XP+(e>>1)}")
        else:
            A(f"v_and_b32 v{XFP+e}, 0xffff0000, v{XP+(e>>1)}")
    A("s_branch L_FIN_CHK")
    A("L_FIN_POLLA:")
    for k in range(4):
        A(f"buffer_load_dwordx4 {vr(FA+4*k,4)}, v9, s[36:39], s{60+k} offen sc1")
    A("L_FIN_CHK:")
    for k in range(4):
        A(f"s_waitcnt vmcnt({3-k})")
        strip_tags(FT, FA + 4 * k, k == 0)
    A(f"v_and_b32 v{FT}, 0xff, v{FT}")
    A(f"v_cmp_ne_u32 vcc, 0, v{FT}")
    poll_branch("L_FIN_POLLA")
    stamp(2)
    for r in range(4):
        A(f"v_add_f32 v{FA+r}, v{FA+r}, v{FA+4+r}")
        A(f"v_add_f32 v{FA+8+r}, v{FA+8+r}, v{FA+12+r}")
    for r in range(4):
        A(f"v_add_f32 v{FA+r}, v{FA+r}, v{FA+8+r}")
    lanes_sum([FA + r for r in range(4)], [FT + r for r in range(4)])
    for e in range(4):
        rbf(FA + e, FA + e)
        A(f"v_add_f32 v{FA+e}, v{FA+e}, v{XFP+e}")
        rbf(FA + e, FA + e)
        A(f"v_add_f32 v{FA+e}, v{FA+e}, v{BV+e}")
    A(f"v_cvt_pk_bf16_f32 v{FA}, v{FA}, v{FA+1}")
    A(f"v_cvt_pk_bf16_f32 v{FA+1}, v{FA+2}, v{FA+3}")
    A("s_mov_b64 exec, 3")
    A(f"buffer_store_dwordx2 {vr(FA,2)}, v2, s[48:51], s57 offen")
    A("s_cmp_lg_u32 s2, 0")
    A("s_cbranch_scc1 L_FIN_DONE")
    A("s_mov_b64 exec, 1")
    A("v_mov_b32 v4, s30")
    A("v_mov_b32 v5, s31")
    A(f"v_mov_b32 v6, {R_OFF}")
    A("buffer_store_dwordx2 v[4:5], v6, s[36:39], 0 offen sc1")
    A("L_FIN_DONE:")
    stamp(5)
    endp()

    C("---- H2 ----")
    A("L_H2:")
    if hprio:
        A(f"s_setprio {hprio}")
    A("s_barrier")
    if noh or h2off:
        endp()
    get_tags()
    wait_flag("L_H2_QW")
    stamp(0)
    WO = 100
    P = 16
    MK2 = 40
    AS2 = 44
    DA = 60
    GO = 80
    VFF2 = 15
    srd(40, 12, 13, 4096 * 1280)
    A("s_lshr_b32 s58, s33, 1")
    A("s_and_b32 s59, s33, 1")
    A("s_lshl_b32 s56, s32, 7")
    A("s_lshl_b32 s57, s58, 5")
    A("s_add_u32 s56, s56, s57")
    A("s_mul_i32 s56, s56, 1280")
    A("s_mul_i32 s57, s59, 640")
    A("s_add_u32 s56, s56, s57")
    A("s_add_u32 s57, s56, 2560")
    A("v_lshrrev_b32 v6, 3, v0")
    A("v_and_b32 v7, 7, v0")
    A("v_mul_u32_u24 v3, 5120, v6")
    A("v_lshl_add_u32 v3, v7, 4, v3")
    for u in range(4):
        for v in range(5):
            so = "s56" if u < 2 else "s57"
            A(f"buffer_load_dwordx4 {vr(WO+4*(u*5+v),4)}, v3, s[40:43], {so} offen offset:{(u&1)*1280+128*v}{wp}")
    sel_masks(MK2, 0, 8, 9, False)
    A(f"v_mov_b32 v{VFF2}, 0xff")
    A("v_and_b32 v2, 31, v0")
    A("v_lshlrev_b32 v2, 4, v2")
    A("v_mov_b32 v10, 0")
    A("s_lshl_b32 s60, s2, 9")
    A(f"s_add_u32 s60, s60, {OP_OFF}")
    A("s_lshl_b32 s61, s32, 7")
    A(f"s_add_u32 s61, s61, {ML_OFF}")
    A("s_lshl_b32 s62, s33, 4")
    A("s_add_u32 s62, s62, s61")
    A("s_lshl_b32 s63, s32, 12")
    A("s_lshl_b32 s64, s58, 7")
    A("s_add_u32 s63, s63, s64")
    A(f"s_add_u32 s63, s63, {OP_OFF}")
    A("v_lshlrev_b32 v11, 9, v7")
    A("v_lshl_add_u32 v11, v6, 4, v11")
    A("v_lshlrev_b32 v12, 4, v7")
    A("v_lshrrev_b32 v8, 3, v5")
    A("v_lshrrev_b32 v9, 1, v4")
    A("v_lshl_add_u32 v8, v8, 1, v9")
    A("v_and_b32 v9, 7, v5")
    A("v_lshlrev_b32 v13, 5, v9")
    A("v_and_b32 v9, 1, v4")
    A("v_lshl_add_u32 v13, v9, 4, v13")
    A("v_lshl_add_u32 v13, v8, 8, v13")
    A("v_lshlrev_b32 v14, 5, v5")
    A("v_lshl_add_u32 v14, v4, 4, v14")
    A("s_mul_i32 s64, s2, 1280")
    A(f"s_add_u32 s64, s64, {AP_OFF}")
    A("s_mov_b32 s66, 0x00ff00ff")
    A("s_mov_b32 s67, 0")
    A("s_waitcnt vmcnt(0)")
    stamp(4)
    if notail:
        endp()
    A("s_barrier")
    stamp(5)
    for w in range(4):
        A(f"ds_read_b64 {vr(P+16+2*w,2)}, v10 offset:{L_PART+576*w+512}")
    for w in range(4):
        A(f"ds_read_b128 {vr(P+4*w,4)}, v2 offset:{L_PART+576*w}")
    M = 2 + 4
    A("s_waitcnt lgkmcnt(4)")
    A(f"v_max3_f32 v8, v{P+16}, v{P+18}, v{P+20}")
    A(f"v_max_f32 v8, v8, v{P+22}")
    for w in range(4):
        A(f"v_sub_f32 v{P+16+2*w}, v{P+16+2*w}, v8")
    for w in range(4):
        A(f"v_mul_f32 v{P+16+2*w}, {fl(LOG2E)}, v{P+16+2*w}")
    for w in range(4):
        A(f"v_exp_f32 v{P+16+2*w}, v{P+16+2*w}")
    A(f"v_mov_b32 v{GO+4}, v8")
    A(f"v_mov_b32 v{GO+5}, s30")
    A(f"v_mov_b32 v{GO+7}, s31")
    A(f"v_mul_f32 v{GO+6}, v{P+16}, v{P+17}")
    for w in range(1, 4):
        A(f"v_fmac_f32 v{GO+6}, v{P+16+2*w}, v{P+17+2*w}")
    A("s_waitcnt lgkmcnt(0)")
    for r in range(4):
        A(f"v_mul_f32 v{GO+r}, v{P+16}, v{P+r}")
    for w in range(1, 4):
        for r in range(4):
            A(f"v_fmac_f32 v{GO+r}, v{P+16+2*w}, v{P+4*w+r}")
    pack_tags(GO, VFF2)
    A("s_mov_b32 exec_hi, 0")
    A(f"buffer_store_dwordx4 {vr(GO,4)}, v2, s[36:39], s60 offen sc1")
    A("s_mov_b64 exec, 1")
    A(f"buffer_store_dwordx4 {vr(GO+4,4)}, v10, s[36:39], s62 offen sc1")
    A("s_mov_b64 exec, -1")
    stamp(6)
    GI = P
    A("L_H2_POLL:")
    A(f"buffer_load_dwordx4 {vr(GI+4,4)}, v12, s[36:39], s61 offen sc1")
    A(f"buffer_load_dwordx4 {vr(GI,4)}, v11, s[36:39], s63 offen sc1")
    A("s_waitcnt vmcnt(0)")
    strip_tags(8, GI, True)
    A("v_and_b32 v8, 0xff, v8")
    tagcheck(8, GI + 4, False)
    A("v_cmp_ne_u32 vcc, 0, v8")
    poll_branch("L_H2_POLL")
    stamp(7)
    mm, ll = GI + 4, GI + 6
    A(f"v_mov_b32 v8, v{mm}")
    oct_reduce([8], "v_max_f32")
    A(f"v_sub_f32 v8, v{mm}, v8")
    A(f"v_mul_f32 v8, {fl(LOG2E)}, v8")
    A("v_exp_f32 v8, v8")
    A(f"v_mul_f32 v9, v8, v{ll}")
    for r in range(4):
        A(f"v_mul_f32 v{GI+r}, v8, v{GI+r}")
    oct_reduce([9, GI, GI + 1, GI + 2, GI + 3])
    A("v_rcp_f32 v9, v9")
    for r in range(4):
        A(f"v_mul_f32 v{GI+r}, v{GI+r}, v9")
    for r in range(4):
        A(f"v_cvt_pk_bf16_f32 v{GI+r}, v{GI+r}, v{GI+r}")
    for u in range(4):
        for r in range(4):
            A(f"v_and_b32 v{AS2+4*u+r}, v{GI+u}, v{MK2+r}")
    for u in range(4):
        for v in range(5):
            c = "0" if u == 0 else vr(DA + 4 * v, 4)
            A(f"v_mfma_f32_16x16x32_bf16 {vr(DA+4*v,4)}, {vr(AS2+4*u,4)}, {vr(WO+4*(u*5+v),4)}, {c}")
    for a in (0, 2):
        for r in range(4):
            A(f"v_permlane32_swap_b32 v{DA+4*a+r}, v{DA+4*(a+1)+r}")
    for a in (0, 2):
        for r in range(4):
            A(f"v_add_f32_dpp v{DA+4*a+r}, v{DA+4*(a+1)+r}, v{DA+4*a+r} row_ror:8 {DPPM}")
    for r in range(4):
        A(f"v_mov_b32_dpp v{DA+r}, v{DA+8+r} row_ror:8 row_mask:0xf bank_mask:0xc")
    pack_tags(DA, VFF2)
    A(f"buffer_store_dwordx4 {vr(DA,4)}, v13, s[36:39], s64 offen sc1")
    pair_sum([DA + 16 + r for r in range(4)], [DA + 4 + r for r in range(4)])
    pack_tags(DA + 16, VFF2)
    A("s_mov_b64 exec, s[66:67]")
    A(f"buffer_store_dwordx4 {vr(DA+16,4)}, v14, s[36:39], s64 offen offset:1024 sc1")
    stamp(3)
    endp()

    C("---- streamers ----")
    A("L_STREAM:")
    stamp(5)
    if sprio:
        A(f"s_setprio {sprio}")
    RB = 64
    NS = NP
    AQ = 8
    MKS = 24
    DSC = 28
    DO = 32
    PA = 36
    vS, vT, vP, vP2s, vP2, vL, vM, vT2 = 44, 45, 46, 47, 48, 49, 50, 51
    vK, vV = 2, 3
    vTK, vZ, vOne = 56, 57, 58
    assert RB + 32 * NS <= 256
    A("s_lshl_b32 s56, s32, 22")
    A("s_add_u32 s40, s6, s56")
    A("s_addc_u32 s41, s7, 0")
    A(f"s_mov_b32 s42, {4<<20}")
    A("s_mov_b32 s43, 0x20000")
    A("s_add_u32 s44, s8, s56")
    A("s_addc_u32 s45, s9, 0")
    A(f"s_mov_b32 s46, {4<<20}")
    A("s_mov_b32 s47, 0x20000")
    A(f"v_lshlrev_b32 v{vK}, 8, v5")
    A(f"v_lshl_add_u32 v{vK}, v4, 4, v{vK}")
    A(f"v_lshlrev_b32 v{vV}, 4, v0")
    A("s_lshl_b32 s72, s33, 19")
    A("s_sub_u32 s57, s3, 4")
    A("s_lshl_b32 s57, s57, 12")
    A("s_add_u32 s56, s72, s57")
    SOFF = 60

    def req_ticket():
        A("s_mov_b64 exec, 1")
        A(f"ds_add_rtn_u32 v{vTK}, v{vZ}, v{vOne} offset:{L_FLAG+8}")
        A("s_mov_b64 exec, -1")

    def slot_regs(slot):
        return RB + 32 * slot

    def loads(slot):
        b = slot_regs(slot)
        for kk in range(4):
            A(f"buffer_load_dwordx4 {vr(b+4*kk,4)}, v{vK}, s[40:43], s{SOFF+slot} offen offset:{64*kk}{kp}")
        for u in range(4):
            A(f"buffer_load_dwordx4 {vr(b+16+4*u,4)}, v{vV}, s[44:47], s{SOFF+slot} offen offset:{1024*u}{kp}")

    def issue_static(slot):
        A(f"s_mov_b32 s{SOFF+slot}, s56")
        A("s_add_u32 s56, s56, 16384")
        loads(slot)

    def issue(slot):
        A("s_waitcnt lgkmcnt(0)")
        A(f"v_readfirstlane_b32 s58, v{vTK}")
        A("s_lshl_b32 s59, s58, 12")
        A("s_add_u32 s59, s59, s72")
        A("s_cmp_lt_u32 s58, 128")
        A(f"s_cselect_b32 s{SOFF+slot}, s59, {OOB}")
        loads(slot)
        req_ticket()

    if diag >= 2:
        A("v_mov_b32 v63, 0")
        A("s_mov_b32 m0, 0")
        A("s_mov_b32 s76, 0")
    for k in range(min(b0early, DS)):
        issue_static(k)
    stamp(7)
    A("s_barrier")
    stamp(0)
    for k in range(min(b0early, DS), min(DS, NP)):
        issue_static(k)
    A(f"v_mov_b32 v{vZ}, 0")
    A(f"v_mov_b32 v{vOne}, 1")
    sel_masks(MKS, 0, vT, vT2, True)
    A(f"v_mov_b32 v{vM}, 0xff800000")
    A(f"v_mov_b32 v{vL}, 0")
    for r in range(4):
        A(f"v_mov_b32 v{DO+r}, 0")
    A("v_lshlrev_b32 v6, 4, v4")
    A("s_mov_b32 s81, 0")
    for k in range(DS, NP):
        A("s_cmp_lg_u32 s81, 0")
        A(f"s_cbranch_scc1 L_FILL_{k}")
        A(f"s_waitcnt vmcnt({PER*(DS-1)})")
        read_flag(vT, 81)
        A(f"L_FILL_{k}:")
        issue_static(k)
    stamp(1)
    wait_flag("L_S_QW", vT, 81)
    for kk in range(4):
        A(f"ds_read_b128 {vr(AQ+4*kk,4)}, v6 offset:{L_Q+64*kk}")
    A("s_waitcnt lgkmcnt(0)")
    req_ticket()
    stamp(2)

    uid = [0]

    def step(slot, wait, issue_slot):
        uid[0] += 1
        u = uid[0]
        b = slot_regs(slot)
        A(f"s_cmp_ge_u32 s{SOFF+slot}, {OOB}")
        A("s_cbranch_scc1 L_SDONE")
        A(f"s_waitcnt vmcnt({wait})")
        if diag >= 2:
            A("s_waitcnt lgkmcnt(0)")
            A("v_writelane_b32 v63, s76, m0")
            A("s_memrealtime s[76:77]")
            A("s_add_u32 m0, m0, 1")
        if issue_slot is not None:
            issue(issue_slot)
        for kk in range(4):
            c = "0" if kk == 0 else vr(DSC, 4)
            A(f"v_mfma_f32_16x16x32_bf16 {vr(DSC,4)}, {vr(AQ+4*kk,4)}, {vr(b+4*kk,4)}, {c}")
        rbf(vT, DSC)
        A(f"v_mul_f32 v{vT}, {fl(SCALE)}, v{vT}")
        rbf(vS, vT)
        A(f"v_cmp_gt_f32 vcc, v{vS}, v{vM}")
        A(f"s_cbranch_vccz L_NORESC_{u}")
        A(f"v_max_f32_dpp v{vT}, v{vS}, v{vS} row_ror:8 {DPPM}")
        for s in (4, 2, 1):
            A(f"v_max_f32_dpp v{vT}, v{vT}, v{vT} row_ror:{s} {DPPM}")
        A(f"v_max_f32 v{vT}, v{vT}, v{vM}")
        A(f"v_sub_f32 v{vT2}, v{vM}, v{vT}")
        A(f"v_mul_f32 v{vT2}, {fl(LOG2E)}, v{vT2}")
        A(f"v_exp_f32 v{vT2}, v{vT2}")
        A(f"v_mov_b32 v{vM}, v{vT}")
        A(f"v_mul_f32 v{vL}, v{vL}, v{vT2}")
        for r in range(4):
            A(f"v_mul_f32 v{DO+r}, v{DO+r}, v{vT2}")
        A(f"L_NORESC_{u}:")
        A(f"v_sub_f32 v{vT}, v{vS}, v{vM}")
        A(f"v_mul_f32 v{vT}, {fl(LOG2E)}, v{vT}")
        A(f"v_exp_f32 v{vP}, v{vT}")
        A(f"v_cvt_pk_bf16_f32 v{vP2s}, v{vP}, v{vP}")
        A(f"v_cvt_pk_bf16_f32 v{vP2}, v{vP}, v{vP}")
        A(f"v_add_f32 v{vL}, v{vL}, v{vP}")
        A(f"v_mov_b32_dpp v{vP2}, v{vP2s} row_shl:1 row_mask:0x2 bank_mask:0xf")
        A(f"v_mov_b32_dpp v{vP2}, v{vP2s} row_shl:2 row_mask:0x4 bank_mask:0xf")
        A(f"v_mov_b32_dpp v{vP2}, v{vP2s} row_shl:3 row_mask:0x8 bank_mask:0xf")

        def ands(uu):
            a = PA + 4 * (uu & 1)
            for r in range(4):
                A(f"v_and_b32_dpp v{a+r}, v{vP2}, v{MKS+r} row_newbcast:{4*uu} {DPPM}")

        def pv(uu):
            a = PA + 4 * (uu & 1)
            A(f"v_mfma_f32_16x16x32_bf16 {vr(DO,4)}, {vr(a,4)}, {vr(b+16+4*uu,4)}, {vr(DO,4)}")
        ands(0); ands(1); pv(0); ands(2); pv(1); ands(3); pv(2); pv(3)

    RS = DIST + 1
    assert RS <= NP
    first = NP - RS
    for n in range(first):
        step(n, PER * (NP - 1 - n), None)
    step(first, PER * (RS - 1), None)
    A("L_SLOOP:")
    for i in range(RS):
        cons = first + (i + 1) % RS
        free = first + i % RS
        step(cons, PER * (DIST - 1), free)
    A("s_branch L_SLOOP")

    A("L_SDONE:")
    stamp(3)
    if diag >= 2:
        A("s_waitcnt vmcnt(0) lgkmcnt(0)")
        A("v_writelane_b32 v63, s76, m0")
        A("s_lshl_b32 s58, s2, 2")
        A("s_add_u32 s58, s58, s3")
        A("s_sub_u32 s58, s58, 4")
        A("s_lshl_b32 s58, s58, 8")
        A(f"s_add_u32 s58, s58, {TS2_OFF}")
        A("v_lshlrev_b32 v62, 2, v0")
        A("buffer_store_dword v63, v62, s[36:39], s58 offen")
    row_sum(vL)
    A("v_lshlrev_b32 v6, 5, v5")
    A("v_lshl_add_u32 v6, v4, 4, v6")
    A("s_sub_u32 s58, s3, 4")
    A("s_mul_i32 s58, s58, 576")
    A("v_add_u32 v6, s58, v6")
    A("v_mov_b32 v7, s58")
    A(f"v_mov_b32 v52, v{vM}")
    A(f"v_mov_b32 v53, v{vL}")
    A("s_mov_b32 exec_hi, 0")
    A(f"ds_write_b128 v6, {vr(DO,4)} offset:{L_PART}")
    A("s_mov_b64 exec, 1")
    A(f"ds_write_b64 v7, v[52:53] offset:{L_PART+512}")
    A("s_mov_b64 exec, -1")
    A("s_waitcnt lgkmcnt(0)")
    A("s_barrier")
    stamp(4)
    flush_stamps()
    A("L_END:")
    A("s_endpgm")

    L = [x for x in L if x is not None]
    out, nins = hz.fix(L)
    out.append('.section .rodata,"a"')
    out.append(".p2align 6")
    out.append(f".amdhsa_kernel {NAME}")
    out.append("  .amdhsa_next_free_vgpr 256")
    out.append("  .amdhsa_next_free_sgpr 102")
    out.append("  .amdhsa_accum_offset 256")
    out.append("  .amdhsa_group_segment_fixed_size 0")
    out.append("  .amdhsa_kernarg_size 104")
    out.append("  .amdhsa_user_sgpr_count 2")
    out.append("  .amdhsa_user_sgpr_kernarg_segment_ptr 1")
    out.append("  .amdhsa_system_sgpr_workgroup_id_x 1")
    out.append(".end_amdhsa_kernel")
    return "\n".join(out) + "\n"


def parse_spec(spec):
    kw = {}
    if spec:
        for it in spec.split(","):
            k, v = it.split("=")
            try:
                v = int(v)
            except ValueError:
                v = v.replace("+", " ")
            kw[k] = v
    return kw


if __name__ == "__main__":
    spec = sys.argv[1] if len(sys.argv) > 1 else ""
    sys.stdout.write(gen(**parse_spec(spec)))
```

```python
import sys, struct, os
sys.path.insert(0, os.path.dirname(os.path.abspath(__file__)))
import hz

NAME = "parallel_sum__gqa_block_cached__mixer_channel_mlp__decode_kernel"

WS_SIZE = 0x400000
R_OFF = 0x0
QP_OFF = 0x10000
ZP_OFF = 0x30000
OP_OFF = 0x40000
ML_OFF = 0x60000
AP_OFF = 0x70000
BP_OFF = 0xC0000
CNT_OFF = 0x110000
TS_OFF = 0x180000
TS2_OFF = 0x200000
TAG0 = 0x5BD1E995
TAG1 = 0x2545F491

L_XN2 = 0
L_Y2 = 2560
L_Q = 5120
L_PART = 5376
L_HH2 = 7680
L_FLAG = 7936
L_TAB = 8192

OOB = 0x40000000
POLL_MAX = 200000
NFIN = 80


def f2u(x):
    return struct.unpack("<I", struct.pack("<f", x))[0]


def fl(x):
    return "0x%08x" % f2u(x)


LOG2E = 1.4426950408889634
SCALE = 128 ** -0.5


def gen(NP=6, DIST=2, DS=2, kpol="nt", wpol="nt", diag=0, header=True, b0early=0, pubwait=3,
        noq=0, noh=0, h1off=0, h2off=0, notail=0, sprio=0, hprio=0, qprio=0,
        pool=0, NLOC=112, CH=2, KQ=3, LOOK=7, zmap2=0, mprio=0, pmap=0, pfake=0, satom=0):
    L = []
    A = L.append

    def C(s):
        L.append("; " + s)

    if not pool:
        NLOC = 128
    POOL = 8 * (128 - NLOC)
    assert LOOK >= KQ * CH or not pool or satom
    PER = 8
    kp = (" " + kpol) if kpol else ""
    wp = (" " + wpol) if wpol else ""

    def srd(base, lo, hi, size):
        A(f"s_mov_b32 s{base}, s{lo}")
        A(f"s_mov_b32 s{base+1}, s{hi}")
        A(f"s_mov_b32 s{base+2}, {size}")
        A(f"s_mov_b32 s{base+3}, 0x20000")

    def vr(a, n):
        return f"v[{a}:{a+n-1}]"

    DPPM = "row_mask:0xf bank_mask:0xf"

    def rbf(dst, src):
        A(f"v_cvt_pk_bf16_f32 v{dst}, v{src}, v{src}")
        A(f"v_and_b32 v{dst}, 0xffff0000, v{dst}")

    def row_sum(v, steps=(8, 4, 2, 1), op="v_add_f32"):
        for s in steps:
            A(f"{op}_dpp v{v}, v{v}, v{v} row_ror:{s} {DPPM}")

    def oct_reduce(regs, op="v_add_f32"):
        for mod in ("quad_perm:[1,0,3,2]", "quad_perm:[2,3,0,1]", "row_half_mirror"):
            for v in regs:
                A(f"{op}_dpp v{v}, v{v}, v{v} {mod} {DPPM}")

    def swap_add(v, t, which, op="v_add_f32"):
        A(f"v_mov_b32 v{t}, v{v}")
        A(f"v_permlane{which}_swap_b32 v{v}, v{t}")
        A(f"{op} v{v}, v{v}, v{t}")

    def swap_add_n(regs, tmps, which):
        for v, t in zip(regs, tmps):
            A(f"v_mov_b32 v{t}, v{v}")
        for v, t in zip(regs, tmps):
            A(f"v_permlane{which}_swap_b32 v{v}, v{t}")
        for v, t in zip(regs, tmps):
            A(f"v_add_f32 v{v}, v{v}, v{t}")

    def pair_sum(regs, tmps):
        for v, t in zip(regs, tmps):
            A(f"v_mov_b32 v{t}, v{v}")
        for v, t in zip(regs, tmps):
            A(f"v_permlane32_swap_b32 v{v}, v{t}")
        for v, t in zip(regs, tmps):
            A(f"v_add_f32_dpp v{v}, v{t}, v{v} row_ror:8 {DPPM}")

    def wave_sum(v, t):
        row_sum(v)
        swap_add(v, t, 16)
        swap_add(v, t, 32)

    def stamp(slot):
        if diag:
            A(f"s_memrealtime s[{84+2*slot}:{85+2*slot}]")

    def flush_stamps(sv=248):
        if not diag:
            return
        A("s_mov_b64 exec, -1")
        A("s_waitcnt vmcnt(0) lgkmcnt(0)")
        A(f"s_lshl_b32 s82, s2, 9")
        A(f"s_lshl_b32 s83, s3, 6")
        A("s_add_u32 s82, s82, s83")
        A(f"s_add_u32 s82, s82, {TS_OFF}")
        A(f"v_mov_b32 v{sv+4}, 0")
        A("s_mov_b64 exec, 1")
        for k in range(4):
            for r in range(4):
                A(f"v_mov_b32 v{sv+r}, s{84+4*k+r}")
            A(f"buffer_store_dwordx4 v[{sv}:{sv+3}], v{sv+4}, s[36:39], s82 offen offset:{16*k}")
            A("s_nop 1")
        A("s_mov_b64 exec, -1")

    def endp():
        flush_stamps()
        A("s_endpgm")

    def ln(xin, tmp):
        t0, t1, t2, t3, t4, t5 = [tmp + i for i in range(6)]
        A(f"v_add_f32 v{t0}, v{xin}, v{xin+1}")
        for i in range(2, 10):
            A(f"v_add_f32 v{t0}, v{t0}, v{xin+i}")
        wave_sum(t0, t1)
        A(f"v_mul_f32 v{t0}, {fl(1.0/640.0)}, v{t0}")
        A(f"v_sub_f32 v{t2}, v{xin}, v{t0}")
        A(f"v_mul_f32 v{t3}, v{t2}, v{t2}")
        for i in range(1, 10):
            A(f"v_sub_f32 v{t2}, v{xin+i}, v{t0}")
            A(f"v_fmac_f32 v{t3}, v{t2}, v{t2}")
        wave_sum(t3, t1)
        A(f"v_mul_f32 v{t3}, {fl(1.0/640.0)}, v{t3}")
        rbf(t3, t3)
        A(f"v_add_f32 v{t3}, {fl(1e-5)}, v{t3}")
        rbf(t3, t3)
        A(f"v_sqrt_f32 v{t3}, v{t3}")
        rbf(t0, t0)
        rbf(t3, t3)
        A(f"v_rcp_f32 v{t3}, v{t3}")
        for i in range(0, 10, 2):
            A(f"v_sub_f32 v{t1}, v{xin+i}, v{t0}")
            A(f"v_sub_f32 v{t2}, v{xin+i+1}, v{t0}")
            A(f"v_cvt_pk_bf16_f32 v{t4}, v{t1}, v{t2}")
            A(f"v_lshlrev_b32 v{t1}, 16, v{t4}")
            A(f"v_and_b32 v{t2}, 0xffff0000, v{t4}")
            A(f"v_mul_f32 v{t1}, v{t1}, v{t3}")
            A(f"v_mul_f32 v{t2}, v{t2}, v{t3}")
            A(f"v_cvt_pk_bf16_f32 v{xin+i}, v{t1}, v{t1}")
            A(f"v_cvt_pk_bf16_f32 v{xin+i+1}, v{t2}, v{t2}")

    def unpack_pairs(src, dst, n):
        for k in range(n):
            A(f"v_lshlrev_b32 v{dst+2*k}, 16, v{src+k}")
            A(f"v_and_b32 v{dst+2*k+1}, 0xffff0000, v{src+k}")

    def sel_masks(m, lane, t0, t1, eight_rows):
        A(f"v_and_b32 v{t0}, 1, v{lane}")
        A(f"v_cmp_eq_u32 vcc, 1, v{t0}")
        A(f"v_mov_b32 v{t0}, 0x0000ffff")
        A(f"v_mov_b32 v{t1}, 0xffff0000")
        A(f"v_cndmask_b32 v{t0}, v{t0}, v{t1}, vcc")
        A(f"v_and_b32 v{t1}, {15 if eight_rows else 7}, v{lane}")
        A(f"v_lshrrev_b32 v{t1}, 1, v{t1}")
        for r in range(4):
            A(f"v_cmp_eq_u32 vcc, {r}, v{t1}")
            A(f"v_cndmask_b32 v{m+r}, 0, v{t0}, vcc")

    def sel_gemv(n, vals, W, aset, masks, D, D2, tmp, waits=None):
        for t in range(n):
            if waits and t in waits:
                A(f"s_waitcnt vmcnt({waits[t]})")
            a = aset + 4 * (t & 1)
            d = D if (t & 1) == 0 else D2
            for r in range(4):
                A(f"v_and_b32 v{a+r}, v{vals+t}, v{masks+r}")
            c = "0" if t < 2 else vr(d, 4)
            A(f"v_mfma_f32_16x16x32_bf16 {vr(d,4)}, {vr(a,4)}, {vr(W+4*t,4)}, {c}")
        for r in range(4):
            A(f"v_add_f32 v{D+r}, v{D+r}, v{D2+r}")

    def tagcheck(acc, g, first):
        if first:
            A(f"v_xor_b32 v{acc}, s30, v{g+1}")
        else:
            A(f"v_bitop3_b32 v{acc}, v{acc}, v{g+1}, s30 bitop3:0xf6")
        A(f"v_bitop3_b32 v{acc}, v{acc}, v{g+3}, s31 bitop3:0xf6")

    def pack_tags(g, vff):
        for r in range(4):
            A(f"v_bfi_b32 v{g+r}, v{vff}, s{72+r}, v{g+r}")

    def strip_tags(acc, g, first):
        for r in range(4):
            A(f"v_xor_b32 v{g+r}, s{72+r}, v{g+r}")
        if first:
            A(f"v_or3_b32 v{acc}, v{g}, v{g+1}, v{g+2}")
            A(f"v_or_b32 v{acc}, v{acc}, v{g+3}")
        else:
            A(f"v_or3_b32 v{acc}, v{acc}, v{g}, v{g+1}")
            A(f"v_or3_b32 v{acc}, v{acc}, v{g+2}, v{g+3}")

    def poll_branch(label):
        A(f"s_cbranch_vccz {label}_OK")
        A("s_add_u32 s80, s80, 1")
        A(f"s_cmp_lt_u32 s80, {POLL_MAX}")
        A(f"s_cbranch_scc1 {label}")
        A(f"{label}_OK:")

    def read_flag(vt, sdst):
        A(f"v_mov_b32 v{vt}, 0")
        A(f"ds_read_b32 v{vt}, v{vt} offset:{L_FLAG}")
        A("s_waitcnt lgkmcnt(0)")
        A(f"v_readfirstlane_b32 s{sdst}, v{vt}")

    def wait_flag(label, vt=2, sdst=81):
        A("s_mov_b32 s82, 0")
        A(f"{label}:")
        read_flag(vt, sdst)
        A(f"s_cmp_lg_u32 s{sdst}, 0")
        A(f"s_cbranch_scc1 {label}_OK")
        A("s_add_u32 s82, s82, 1")
        A(f"s_cmp_lt_u32 s82, {POLL_MAX*16}")
        A(f"s_cbranch_scc1 {label}")
        A(f"{label}_OK:")

    def get_tags(compact=True):
        A("s_waitcnt lgkmcnt(0)")
        A(f"s_add_u32 s30, s30, {TAG0}")
        A(f"s_add_u32 s31, s31, {TAG1}")
        if compact:
            A("s_and_b32 s72, s30, 0xff")
            A("s_bfe_u32 s73, s30, 0x80008")
            A("s_bfe_u32 s74, s30, 0x80010")
            A("s_lshr_b32 s75, s30, 24")

    if header:
        hdr = open("parallel_sum__gqa_block_cached__mixer_channel_mlp__decode.s.ref").read().split("\n")
        for ln_ in hdr:
            if ln_.startswith("; @launch") or ln_.startswith(".amdgcn_target"):
                break
            if ln_.startswith("; Override") or ln_.startswith("; grid="):
                continue
            L.append(ln_)
    LDS_SIZE = 10240 if pool else 8192
    L.append(f"; @launch grid=(256,1,1) block=(512,1,1) lds={LDS_SIZE}")
    L.append('.amdgcn_target "amdgcn-amd-amdhsa--gfx950"')
    L.append(".text")
    L.append(f".globl {NAME}")
    L.append(".p2align 8")
    L.append(f".type {NAME},@function")
    L.append(f"{NAME}:")

    C("256 workgroups x 8 waves. waves 0..3 helpers, waves 4..7 stream K/V")
    if diag:
        A("s_memrealtime s[96:97]")
        for r in list(range(84, 96)) + [98, 99]:
            A(f"s_mov_b32 s{r}, 0x5a5a5a5a")
    A("s_cmp_ge_u32 s2, 256")
    A("s_cbranch_scc1 L_END")
    A("s_load_dwordx16 s[4:19], s[0:1], 0")
    A("s_load_dwordx8 s[20:27], s[0:1], 64")
    A("s_load_dwordx2 s[28:29], s[0:1], 96")
    A("v_lshrrev_b32 v1, 6, v0")
    A("v_and_b32 v0, 63, v0")
    A("v_readfirstlane_b32 s3, v1")
    A("s_lshr_b32 s32, s2, 3")
    A("s_and_b32 s33, s2, 7")
    A("v_lshrrev_b32 v4, 4, v0")
    A("v_and_b32 v5, 15, v0")
    A("s_waitcnt lgkmcnt(0)")
    srd(36, 28, 29, WS_SIZE)
    A("s_cmp_ge_u32 s3, 4")
    A("s_cbranch_scc1 L_STREAM")
    A(f"s_load_dwordx2 s[30:31], s[28:29], {R_OFF}")
    A("s_mov_b32 s80, 0")
    A("s_cmp_eq_u32 s3, 1")
    A("s_cbranch_scc1 L_H1")
    A("s_cmp_eq_u32 s3, 2")
    A("s_cbranch_scc1 L_H2")
    A("s_cmp_eq_u32 s3, 3")
    A("s_cbranch_scc1 L_FIN")

    C("---- H0 ----")
    stamp(4)
    X = 10
    XF = 16
    T = 26
    MK = 32
    AS = 36
    D = 44
    D2 = 48
    VAL = 52
    G = 72
    W = 100
    srd(40, 4, 5, 1280)
    srd(44, 10, 11, 640 * 8192)
    A("v_lshlrev_b32 v2, 2, v0")
    for k in range(5):
        A(f"buffer_load_dword v{X+k}, v2, s[40:43], 0 offen offset:{256*k}")
    A("v_lshrrev_b32 v6, 3, v0")
    A("v_and_b32 v7, 7, v0")
    A(f"v_mul_u32_u24 v3, {20*8192}, v6")
    A("v_lshl_add_u32 v3, v7, 4, v3")
    if noq:
        A("s_barrier")
        A("v_mov_b32 v7, 0")
        A("v_mov_b32 v8, 1")
        A(f"ds_write_b32 v7, v8 offset:{L_FLAG}")
        endp()
    if qprio:
        A(f"s_setprio {qprio}")
    A("s_lshr_b32 s58, s33, 1")
    A("s_and_b32 s59, s33, 1")
    A(f"s_mul_i32 s56, s58, {160*8192}")
    A("s_lshl_b32 s57, s32, 8")
    A("s_add_u32 s56, s56, s57")
    A("s_lshl_b32 s57, s59, 7")
    A("s_add_u32 s56, s56, s57")
    for t in range(20):
        A(f"buffer_load_dwordx4 {vr(W+4*t,4)}, v3, s[44:47], s56 offen{wp}")
        if t < 19:
            A("s_add_u32 s56, s56, 8192")
    XW = 0
    if pool:
        XW = 1
        A("s_lshl_b32 s70, s32, 8")
        A(f"s_add_u32 s70, s70, {CNT_OFF}")
        A("s_cmp_eq_u32 s33, 0")
        A(f"s_cselect_b32 s57, s70, {OOB}")
        A("v_mov_b32 v8, 0")
        A("s_mov_b64 exec, 1")
        A("buffer_store_dword v8, v8, s[36:39], s57 offen sc1")
        A("s_mov_b64 exec, -1")
    stamp(5)
    A("s_barrier")
    stamp(0)
    sel_masks(MK, 0, T, T + 1, False)
    A("v_mul_u32_u24 v7, 80, v6")
    A("v_lshlrev_b32 v6, 3, v0")
    A(f"s_mul_i32 s57, s58, 640")
    A("v_add_u32 v7, s57, v7")
    A(f"s_waitcnt vmcnt({20+XW})")
    unpack_pairs(X, XF, 5)
    ln(XF, T)
    for k in range(5):
        A(f"ds_write_b64 v6, {vr(XF+2*k,2)} offset:{L_XN2+512*k}")
    A("s_waitcnt lgkmcnt(0)")
    for i in range(5):
        A(f"ds_read_b128 {vr(VAL+4*i,4)}, v7 offset:{L_XN2+16*i}")
    get_tags(False)
    stamp(1)
    sel_gemv(20, VAL, W, AS, MK, D, D2, T, waits={0: 15+XW, 5: 10+XW, 10: 5+XW, 15: XW})
    pair_sum([D, D + 1, D + 2, D + 3], [T, T + 1, T + 2, T + 3])
    A(f"v_mov_b32_dpp v{D}, v{D+2} row_ror:8 row_mask:0xf bank_mask:0xc")
    A(f"v_mov_b32_dpp v{D+1}, v{D+3} row_ror:8 row_mask:0xf bank_mask:0xc")
    A("v_and_b32 v8, 7, v5")
    A("v_lshlrev_b32 v8, 6, v8")
    A("v_lshl_add_u32 v8, v4, 5, v8")
    A("v_lshrrev_b32 v9, 3, v5")
    A("v_lshl_add_u32 v8, v9, 4, v8")
    A("s_lshl_b32 s57, s32, 12")
    A("s_lshl_b32 s58, s58, 10")
    A("s_add_u32 s57, s57, s58")
    A("s_lshl_b32 s59, s59, 9")
    A("s_add_u32 s57, s57, s59")
    A(f"s_add_u32 s57, s57, {QP_OFF}")
    A(f"v_mov_b32 v{G}, v{D}")
    A(f"v_mov_b32 v{G+1}, s30")
    A(f"v_mov_b32 v{G+2}, v{D+1}")
    A(f"v_mov_b32 v{G+3}, s31")
    if pool:
        A("s_waitcnt vmcnt(0)")
    A("s_mov_b32 exec_hi, 0")
    A(f"buffer_store_dwordx4 {vr(G,4)}, v8, s[36:39], s57 offen sc1")
    A("s_mov_b64 exec, -1")
    stamp(2)
    A("v_lshlrev_b32 v9, 4, v0")
    A("s_lshl_b32 s58, s32, 12")
    A(f"s_add_u32 s58, s58, {QP_OFF}")
    if pubwait & 1:
        A("s_waitcnt vmcnt(0)")
    else:
        A("s_nop 1")
    A("L_H0_POLL:")
    for k in range(4):
        A(f"buffer_load_dwordx4 {vr(G+4*k,4)}, v9, s[36:39], s58 offen offset:{1024*k} sc1")
    A("s_waitcnt vmcnt(0)")
    for k in range(4):
        tagcheck(T, G + 4 * k, k == 0)
    A(f"v_cmp_ne_u32 vcc, 0, v{T}")
    poll_branch("L_H0_POLL")
    A(f"v_add_f32 v{T}, v{G}, v{G+4}")
    A(f"v_add_f32 v{T+1}, v{G+2}, v{G+6}")
    for k in range(2, 4):
        A(f"v_add_f32 v{T}, v{T}, v{G+4*k}")
        A(f"v_add_f32 v{T+1}, v{T+1}, v{G+4*k+2}")
    A(f"v_cvt_pk_bf16_f32 v{T}, v{T}, v{T+1}")
    A("v_lshlrev_b32 v6, 2, v0")
    A(f"ds_write_b32 v6, v{T} offset:{L_Q}")
    A("v_mov_b32 v7, 0")
    A("v_mov_b32 v8, 1")
    A("s_waitcnt lgkmcnt(0)")
    A(f"ds_write_b32 v7, v8 offset:{L_FLAG}")
    stamp(3)
    if pool:
        C("---- H0 continues as the manager of shared tiles ----")
        if mprio:
            A(f"s_setprio {mprio}")
        A("s_mov_b32 s60, 0")
        A("s_mov_b32 s61, 0")
        A("s_mov_b32 s82, 0")
        A("v_lshlrev_b32 v6, 2, v0")
        A(f"v_mov_b32 v9, {OOB}")
        A(f"s_mov_b32 s63, {POOL}")

        def m_issue(i):
            lab = f"L_M_SPIN_{i}"
            A(f"{lab}:")
            A(f"ds_read_b32 v2, v7 offset:{L_FLAG+8}")
            A("s_waitcnt lgkmcnt(0)")
            A("v_readfirstlane_b32 s62, v2")
            A(f"s_add_u32 s62, s62, {LOOK}")
            A(f"s_sub_u32 s62, s62, s60")
            A(f"s_cmp_ge_i32 s62, {NLOC+CH}")
            A(f"s_cbranch_scc1 {lab}_OK")
            A("s_add_u32 s82, s82, 1")
            A(f"s_cmp_lt_u32 s82, {POLL_MAX*16}")
            A(f"s_cbranch_scc1 {lab}")
            A(f"{lab}_OK:")

        def m_atomic(slot):
            A(f"v_mov_b32 v{16+slot}, {CH}")
            A("s_mov_b64 exec, 1")
            if pfake != 1:
                A(f"buffer_atomic_add v{16+slot}, v7, s[36:39], s70 offen sc0 sc1")
            A("s_mov_b64 exec, -1")
            A(f"s_add_u32 s60, s60, {CH}")

        lgch = CH.bit_length() - 1
        assert 1 << lgch == CH
        NP_ = 128 - NLOC

        def m_process(slot):
            if pfake:
                A("s_mov_b32 s62, s61")
                A("v_add_u32 v3, s62, v0")
                A(f"s_mul_i32 s64, s33, {128*4096}")
                A(f"s_add_u32 s64, s64, {NLOC*4096}")
                A("v_lshlrev_b32 v8, 12, v3")
                A("v_add_u32 v8, s64, v8")
                A(f"s_mov_b32 s63, {NP_}")
            elif pmap:
                A(f"v_readfirstlane_b32 s62, v{16+slot}")
                A("v_add_u32 v3, s62, v0")
                A(f"v_lshrrev_b32 v8, {lgch}, v3")
                A("v_and_b32 v10, 7, v8")
                A("v_lshrrev_b32 v8, 3, v8")
                A(f"v_lshlrev_b32 v8, {lgch}, v8")
                A(f"v_and_b32 v11, {CH-1}, v3")
                A("v_add_u32 v8, v8, v11")
                A("v_lshl_add_u32 v8, v10, 7, v8")
                A(f"v_add_u32 v8, {NLOC}, v8")
                A("v_lshlrev_b32 v8, 12, v8")
            else:
                A(f"v_readfirstlane_b32 s62, v{16+slot}")
                A("v_add_u32 v3, s62, v0")
                A("v_lshlrev_b32 v8, 12, v3")
                A(f"v_add_u32 v8, {8*NLOC*4096}, v8")
            A("v_cmp_gt_u32 vcc, s63, v3")
            A("v_cndmask_b32 v8, v9, v8, vcc")
            A(f"s_add_u32 s61, s61, {CH}")
            A(f"s_add_u32 s62, s62, {CH}")
            A(f"s_cmp_gt_u32 s62, {NP_ if pfake else POOL}")
            A(f"s_cselect_b64 exec, -1, {(1<<CH)-1}")
            A(f"ds_write_b32 v6, v8 offset:{L_TAB}")
            A("s_mov_b64 exec, -1")
            A(f"v_add_u32 v6, {4*CH}, v6")
            A("s_cbranch_scc1 L_M_DONE_X")

        if satom:
            A("s_lshl_b32 s64, s32, 8")
            A(f"s_add_u32 s64, s64, {CNT_OFF}")
            A("s_add_u32 s66, s28, s64")
            A("s_addc_u32 s67, s29, 0")
            A("L_M_LOOP:")
            m_issue("S")
            if diag:
                A("s_cmp_lg_u32 s60, 0")
                A("s_cbranch_scc1 L_M_NOST")
                stamp(5)
                A("L_M_NOST:")
            A(f"s_sub_u32 s65, s62, {NLOC}")
            A("s_min_u32 s65, s65, 32")
            A("s_mov_b32 s64, s65")
            if pfake != 1:
                A("s_atomic_add s64, s[66:67], 0x0 glc")
            A("s_add_u32 s60, s60, s65")
            A("s_bfm_b64 s[68:69], s65, 0")
            A("s_waitcnt lgkmcnt(0)")
            if pfake:
                A("s_mov_b32 s64, s61")
                A("v_add_u32 v3, s64, v0")
                A(f"s_mul_i32 s62, s33, {128*4096}")
                A(f"s_add_u32 s62, s62, {NLOC*4096}")
                A("v_lshlrev_b32 v8, 12, v3")
                A("v_add_u32 v8, s62, v8")
                A(f"s_mov_b32 s63, {NP_}")
            elif pmap:
                A("v_add_u32 v3, s64, v0")
                A("v_and_b32 v10, 7, v3")
                A("v_lshrrev_b32 v8, 3, v3")
                A("v_lshl_add_u32 v8, v10, 7, v8")
                A(f"v_add_u32 v8, {NLOC}, v8")
                A("v_lshlrev_b32 v8, 12, v8")
            else:
                A("v_add_u32 v3, s64, v0")
                A("v_lshlrev_b32 v8, 12, v3")
                A(f"v_add_u32 v8, {8*NLOC*4096}, v8")
            A("v_cmp_gt_u32 vcc, s63, v3")
            A("v_cndmask_b32 v8, v9, v8, vcc")
            A("s_add_u32 s61, s61, s65")
            A("s_add_u32 s64, s64, s65")
            A(f"s_cmp_gt_u32 s64, {NP_ if pfake else POOL}")
            A("s_cselect_b64 exec, -1, s[68:69]")
            A(f"ds_write_b32 v6, v8 offset:{L_TAB}")
            A("s_mov_b64 exec, -1")
            A("s_cbranch_scc1 L_M_DONE_X")
            A("s_lshl_b32 s65, s65, 2")
            A("v_add_u32 v6, s65, v6")
            A("s_branch L_M_LOOP")
        else:
            for i in range(KQ - 1):
                m_issue(f"P{i}")
                if i == 0:
                    stamp(5)
                m_atomic(i)
            A("L_M_LOOP:")
            for i in range(KQ):
                m_issue(i)
                m_atomic((KQ - 1 + i) % KQ)
                A(f"s_waitcnt vmcnt({KQ-1})")
                m_process(i % KQ)
            A("s_branch L_M_LOOP")
        A("L_M_DONE_X:")
        A("s_waitcnt vmcnt(0) lgkmcnt(0)")
        stamp(7)
        if diag:
            A("s_lshl_b32 s62, s2, 2")
            A("v_mov_b32 v2, s62")
            A("v_mov_b32 v3, s61")
            A("s_mov_b64 exec, 1")
            A("global_store_dword v2, v3, s[26:27]")
            A("s_mov_b64 exec, -1")
    endp()

    C("---- H1 ----")
    A("L_H1:")
    if hprio:
        A(f"s_setprio {hprio}")
    A("v_mov_b32 v2, 0")
    A(f"ds_write_b32 v2, v2 offset:{L_FLAG}")
    A(f"v_mov_b32 v3, {4*NP}")
    A(f"ds_write_b32 v2, v3 offset:{L_FLAG+8}")
    if pool:
        A("v_lshlrev_b32 v2, 4, v0")
        for r in range(4):
            A(f"v_mov_b32 v{8+r}, -1")
        for k in range(2):
            A(f"ds_write_b128 v2, v[8:11] offset:{L_TAB+1024*k}")
    A("s_waitcnt lgkmcnt(0)")
    A("s_barrier")
    if noh or h1off:
        endp()
    A("s_lshr_b32 s57, s2, 6")
    A("s_and_b32 s35, s32, 7")
    if zmap2:
        A("s_lshl_b32 s34, s33, 2")
        A("s_add_u32 s34, s34, s57")
        A("s_cmp_lt_u32 s33, 3")
        A("s_cbranch_scc1 L_H1_MLP")
        A("s_sub_u32 s58, s57, s33")
        A("s_add_u32 s58, s58, 3")
        A("s_and_b32 s58, s58, 3")
        A("s_mul_i32 s34, s33, 3")
        A("s_add_u32 s34, s34, s58")
        A("s_add_u32 s34, s34, 2")
        A("s_cmp_eq_u32 s58, 0")
        A("s_cbranch_scc1 L_H1_EXIT")
    else:
        A("s_mul_i32 s34, s33, 3")
        A("s_add_u32 s34, s34, s57")
        A("s_cmp_lt_u32 s57, 3")
        A("s_cbranch_scc1 L_H1_MLP")
        A("s_add_u32 s34, s33, 24")
        A("s_cmp_ge_u32 s33, 3")
        A("s_cbranch_scc1 L_H1_EXIT")
    A("L_H1_MLP:")
    get_tags()
    wait_flag("L_H1_QW")
    stamp(0)
    W1 = 100
    W2 = 140
    B1 = 14
    VFF = 9
    srd(44, 16, 17, 640 * 3456)
    srd(48, 20, 21, 1728 * 1280)
    srd(52, 18, 19, 3456)
    A("v_lshlrev_b32 v6, 3, v0")
    for k in range(5):
        A(f"ds_read_b64 {vr(XF+2*k,2)}, v6 offset:{L_XN2+512*k}")
    A("v_bfe_u32 v10, v0, 3, 1")
    A("v_and_b32 v7, 7, v0")
    A("v_mul_u32_u24 v8, 20, v4")
    A("v_mad_u32_u24 v8, v10, 10, v8")
    A(f"v_mul_u32_u24 v3, 3456, v8")
    A("v_lshl_add_u32 v3, v7, 4, v3")
    A(f"s_mul_i32 s56, s35, {80*3456}")
    A("s_lshl_b32 s57, s34, 7")
    A("s_add_u32 s56, s56, s57")
    for t in range(10):
        A(f"buffer_load_dwordx4 {vr(W1+4*t,4)}, v3, s[44:47], s56 offen{wp}")
        if t < 9:
            A("s_add_u32 s56, s56, 3456")
    A("v_lshlrev_b32 v11, 3, v5")
    A(f"buffer_load_dwordx2 {vr(B1,2)}, v11, s[52:55], s57 offen")
    A(f"v_mul_u32_u24 v3, {16*1280}, v4")
    A("v_lshl_add_u32 v3, v5, 4, v3")
    A("v_cmp_gt_u32 vcc, 10, v5")
    A(f"v_mov_b32 v11, {OOB}")
    A("v_cndmask_b32 v3, v11, v3, vcc")
    A(f"s_mul_i32 s56, s34, {64*1280}")
    A("s_mul_i32 s57, s35, 160")
    A("s_add_u32 s56, s56, s57")
    for t in range(16):
        A(f"buffer_load_dwordx4 {vr(W2+4*t,4)}, v3, s[48:51], s56 offen{wp}")
        if t < 15:
            A("s_add_u32 s56, s56, 1280")
    sel_masks(MK, 0, T, T + 1, False)
    A("s_mul_i32 s57, s35, 320")
    A("v_lshlrev_b32 v8, 2, v8")
    A("v_add_u32 v8, s57, v8")
    A(f"v_mov_b32 v{VFF}, 0xff")
    A("s_waitcnt lgkmcnt(0)")
    for i in range(10):
        A(f"v_and_b32 v{XF+i}, 0xffff0000, v{XF+i}")
    ln(XF, T)
    for k in range(5):
        A(f"ds_write_b64 v6, {vr(XF+2*k,2)} offset:{L_Y2+512*k}")
    A("s_waitcnt lgkmcnt(0)")
    for i in range(5):
        A(f"ds_read_b64 {vr(VAL+2*i,2)}, v8 offset:{L_Y2+8*i}")
    A("s_waitcnt lgkmcnt(0)")
    stamp(1)
    A("s_waitcnt vmcnt(17)")
    stamp(2)
    sel_gemv(10, VAL, W1, AS, MK, D, D2, T)
    pair_sum([D, D + 1, D + 2, D + 3], [T, T + 1, T + 2, T + 3])
    pack_tags(D, VFF)
    A("v_lshlrev_b32 v8, 5, v5")
    A("v_lshl_add_u32 v8, v4, 4, v8")
    A("s_lshl_b32 s57, s34, 3")
    A("s_add_u32 s57, s57, s35")
    A("s_lshl_b32 s57, s57, 8")
    A(f"s_add_u32 s57, s57, {ZP_OFF}")
    A("s_mov_b32 s60, 0x00ff00ff")
    A("s_mov_b32 s61, 0")
    A("s_mov_b64 exec, s[60:61]")
    A(f"buffer_store_dwordx4 {vr(D,4)}, v8, s[36:39], s57 offen sc1")
    A("s_mov_b64 exec, -1")
    stamp(3)
    A("v_lshlrev_b32 v10, 4, v0")
    A("s_lshl_b32 s58, s34, 11")
    A(f"s_add_u32 s58, s58, {ZP_OFF}")
    if pubwait & 2:
        A("s_waitcnt vmcnt(0)")
    A("L_H1_POLL:")
    for k in range(2):
        A(f"buffer_load_dwordx4 {vr(G+4*k,4)}, v10, s[36:39], s58 offen offset:{1024*k} sc1")
    A("s_waitcnt vmcnt(0)")
    strip_tags(T, G, True)
    strip_tags(T, G + 4, False)
    A(f"v_and_b32 v{T}, 0xff, v{T}")
    A(f"v_cmp_ne_u32 vcc, 0, v{T}")
    poll_branch("L_H1_POLL")
    stamp(7)
    Z = G
    for r in range(4):
        A(f"v_add_f32 v{Z+r}, v{Z+r}, v{G+4+r}")
    swap_add_n([Z + r for r in range(4)], [T + r for r in range(4)], 16)
    swap_add_n([Z + r for r in range(4)], [T + r for r in range(4)], 32)
    c1 = -2.0 * 0.7978845608028654 * LOG2E
    c2 = c1 * 0.044715
    A(f"s_mov_b32 s62, {fl(c2)}")
    for e in range(4):
        z = Z + e
        rbf(z, z)
        if (e & 1) == 0:
            A(f"v_lshlrev_b32 v{T+2}, 16, v{B1+(e>>1)}")
        else:
            A(f"v_and_b32 v{T+2}, 0xffff0000, v{B1+(e>>1)}")
        A(f"v_add_f32 v{z}, v{z}, v{T+2}")
        rbf(z, z)
        A(f"v_mul_f32 v{T+2}, v{z}, v{z}")
        A(f"v_mov_b32 v{T+3}, {fl(c1)}")
        A(f"v_fmac_f32 v{T+3}, s62, v{T+2}")
        A(f"v_mul_f32 v{T+3}, v{T+3}, v{z}")
        A(f"v_exp_f32 v{T+3}, v{T+3}")
        A(f"v_add_f32 v{T+3}, 1.0, v{T+3}")
        A(f"v_rcp_f32 v{T+3}, v{T+3}")
        A(f"v_mul_f32 v{z}, v{z}, v{T+3}")
        A(f"v_cvt_pk_bf16_f32 v{z}, v{z}, v{z}")
    A("v_lshlrev_b32 v6, 4, v5")
    A(f"ds_write_b128 v6, {vr(Z,4)} offset:{L_HH2}")
    A("v_lshlrev_b32 v7, 6, v4")
    A("s_waitcnt lgkmcnt(0)")
    for i in range(4):
        A(f"ds_read_b128 {vr(VAL+4*i,4)}, v7 offset:{L_HH2+16*i}")
    sel_masks(MK, 0, T + 2, T + 3, True)
    A("s_waitcnt lgkmcnt(0)")
    sel_gemv(16, VAL, W2, AS, MK, D, D2, T)
    pack_tags(D, VFF)
    A("s_lshl_b32 s57, s34, 3")
    A("s_add_u32 s57, s57, s35")
    A("s_mul_i32 s57, s57, 384")
    A(f"s_add_u32 s57, s57, {BP_OFF}")
    A("s_mov_b32 s60, 0x03ff03ff")
    A("s_mov_b32 s61, 0")
    A("s_mov_b64 exec, s[60:61]")
    A(f"buffer_store_dwordx4 {vr(D,4)}, v8, s[36:39], s57 offen sc1")
    A("s_mov_b64 exec, -1")
    stamp(4)
    A("L_H1_EXIT:")
    endp()

    C("---- final consumer: 8 output columns ----")
    A("L_FIN:")
    A(f"s_cmp_ge_u32 s2, {NFIN}")
    A("s_cbranch_scc1 L_END")
    if noh or notail:
        A("s_branch L_END")
    XP = 10; B2P = 12; BV = 14
    FA = 20
    FB = 36
    FT = 40
    srd(40, 4, 5, 1280)
    srd(44, 22, 23, 1280)
    srd(48, 24, 25, 1280)
    A("s_lshl_b32 s57, s2, 4")
    A("v_and_b32 v6, 1, v0")
    A("v_lshlrev_b32 v2, 3, v6")
    A(f"buffer_load_dwordx2 {vr(XP,2)}, v2, s[40:43], s57 offen")
    A(f"buffer_load_dwordx2 {vr(B2P,2)}, v2, s[44:47], s57 offen")
    A("v_lshrrev_b32 v7, 1, v0")
    A("s_mul_i32 s58, s2, 6554")
    A("s_lshr_b32 s58, s58, 16")
    A("s_mul_i32 s59, s58, 10")
    A("s_sub_u32 s59, s2, s59")
    A("s_mul_i32 s58, s58, 384")
    A("s_lshl_b32 s59, s59, 5")
    A("s_add_u32 s58, s58, s59")
    A(f"s_add_u32 s58, s58, {BP_OFF}")
    A("v_mul_u32_u24 v3, 3072, v7")
    A("v_lshl_add_u32 v3, v6, 4, v3")
    A("s_cmp_ge_u32 s2, 40")
    A("s_cselect_b32 s60, 1, 0")
    A("s_mul_i32 s61, s60, 40")
    A("s_sub_u32 s61, s2, s61")
    A("s_lshl_b32 s61, s61, 5")
    A("s_mul_i32 s60, s60, 1280")
    A("s_add_u32 s60, s60, s61")
    A(f"s_add_u32 s60, s60, {AP_OFF}")
    for k in range(1, 4):
        A(f"s_add_u32 s{60+k}, s60, {k*32*2560}")
    A("v_mul_u32_u24 v9, 2560, v7")
    A("v_lshl_add_u32 v9, v6, 4, v9")
    A("s_barrier")
    get_tags()
    for r in range(4):
        A(f"v_mov_b32 v{FB+r}, 0")
    A("s_mov_b32 s64, -1")
    A("s_mov_b32 s65, 0x003fffff")
    stamp(4)
    A("s_barrier")
    stamp(0)

    def lanes_sum(regs, tmps):
        for s_ in (2, 4, 8):
            for v in regs:
                A(f"v_add_f32_dpp v{v}, v{v}, v{v} row_ror:{s_} {DPPM}")
        swap_add_n(regs, tmps, 16)
        swap_add_n(regs, tmps, 32)

    A("s_mov_b64 exec, s[64:65]")
    A("L_FIN_POLLB:")
    A(f"buffer_load_dwordx4 {vr(FB,4)}, v3, s[36:39], s58 offen sc1")
    A("s_waitcnt vmcnt(0)")
    strip_tags(FT, FB, True)
    A(f"v_and_b32 v{FT}, 0xff, v{FT}")
    A(f"v_cmp_ne_u32 vcc, 0, v{FT}")
    poll_branch("L_FIN_POLLB")
    A("s_mov_b64 exec, -1")
    stamp(1)
    for k in range(4):
        A(f"buffer_load_dwordx4 {vr(FA+4*k,4)}, v9, s[36:39], s{60+k} offen sc1")
    lanes_sum([FB + r for r in range(4)], [FT + r for r in range(4)])
    for e in range(4):
        rbf(FB + e, FB + e)
        if (e & 1) == 0:
            A(f"v_lshlrev_b32 v{FT}, 16, v{B2P+(e>>1)}")
        else:
            A(f"v_and_b32 v{FT}, 0xffff0000, v{B2P+(e>>1)}")
        A(f"v_add_f32 v{FB+e}, v{FB+e}, v{FT}")
        rbf(BV + e, FB + e)
    XFP = FB
    for e in range(4):
        if (e & 1) == 0:
            A(f"v_lshlrev_b32 v{XFP+e}, 16, v{XP+(e>>1)}")
        else:
            A(f"v_and_b32 v{XFP+e}, 0xffff0000, v{XP+(e>>1)}")
    A("s_branch L_FIN_CHK")
    A("L_FIN_POLLA:")
    for k in range(4):
        A(f"buffer_load_dwordx4 {vr(FA+4*k,4)}, v9, s[36:39], s{60+k} offen sc1")
    A("L_FIN_CHK:")
    for k in range(4):
        A(f"s_waitcnt vmcnt({3-k})")
        strip_tags(FT, FA + 4 * k, k == 0)
    A(f"v_and_b32 v{FT}, 0xff, v{FT}")
    A(f"v_cmp_ne_u32 vcc, 0, v{FT}")
    poll_branch("L_FIN_POLLA")
    stamp(2)
    for r in range(4):
        A(f"v_add_f32 v{FA+r}, v{FA+r}, v{FA+4+r}")
        A(f"v_add_f32 v{FA+8+r}, v{FA+8+r}, v{FA+12+r}")
    for r in range(4):
        A(f"v_add_f32 v{FA+r}, v{FA+r}, v{FA+8+r}")
    lanes_sum([FA + r for r in range(4)], [FT + r for r in range(4)])
    for e in range(4):
        rbf(FA + e, FA + e)
        A(f"v_add_f32 v{FA+e}, v{FA+e}, v{XFP+e}")
        rbf(FA + e, FA + e)
        A(f"v_add_f32 v{FA+e}, v{FA+e}, v{BV+e}")
    A(f"v_cvt_pk_bf16_f32 v{FA}, v{FA}, v{FA+1}")
    A(f"v_cvt_pk_bf16_f32 v{FA+1}, v{FA+2}, v{FA+3}")
    A("s_mov_b64 exec, 3")
    A(f"buffer_store_dwordx2 {vr(FA,2)}, v2, s[48:51], s57 offen")
    A("s_cmp_lg_u32 s2, 0")
    A("s_cbranch_scc1 L_FIN_DONE")
    A("s_mov_b64 exec, 1")
    A("v_mov_b32 v4, s30")
    A("v_mov_b32 v5, s31")
    A(f"v_mov_b32 v6, {R_OFF}")
    A("buffer_store_dwordx2 v[4:5], v6, s[36:39], 0 offen sc1")
    A("L_FIN_DONE:")
    stamp(5)
    endp()

    C("---- H2 ----")
    A("L_H2:")
    if hprio:
        A(f"s_setprio {hprio}")
    A("s_barrier")
    if noh or h2off:
        endp()
    get_tags()
    wait_flag("L_H2_QW")
    stamp(0)
    WO = 100
    P = 16
    MK2 = 40
    AS2 = 44
    DA = 60
    GO = 80
    VFF2 = 15
    srd(40, 12, 13, 4096 * 1280)
    A("s_lshr_b32 s58, s33, 1")
    A("s_and_b32 s59, s33, 1")
    A("s_lshl_b32 s56, s32, 7")
    A("s_lshl_b32 s57, s58, 5")
    A("s_add_u32 s56, s56, s57")
    A("s_mul_i32 s56, s56, 1280")
    A("s_mul_i32 s57, s59, 640")
    A("s_add_u32 s56, s56, s57")
    A("s_add_u32 s57, s56, 2560")
    A("v_lshrrev_b32 v6, 3, v0")
    A("v_and_b32 v7, 7, v0")
    A("v_mul_u32_u24 v3, 5120, v6")
    A("v_lshl_add_u32 v3, v7, 4, v3")
    for u in range(4):
        for v in range(5):
            so = "s56" if u < 2 else "s57"
            A(f"buffer_load_dwordx4 {vr(WO+4*(u*5+v),4)}, v3, s[40:43], {so} offen offset:{(u&1)*1280+128*v}{wp}")
    sel_masks(MK2, 0, 8, 9, False)
    A(f"v_mov_b32 v{VFF2}, 0xff")
    A("v_and_b32 v2, 31, v0")
    A("v_lshlrev_b32 v2, 4, v2")
    A("v_mov_b32 v10, 0")
    A("s_lshl_b32 s60, s2, 9")
    A(f"s_add_u32 s60, s60, {OP_OFF}")
    A("s_lshl_b32 s61, s32, 7")
    A(f"s_add_u32 s61, s61, {ML_OFF}")
    A("s_lshl_b32 s62, s33, 4")
    A("s_add_u32 s62, s62, s61")
    A("s_lshl_b32 s63, s32, 12")
    A("s_lshl_b32 s64, s58, 7")
    A("s_add_u32 s63, s63, s64")
    A(f"s_add_u32 s63, s63, {OP_OFF}")
    A("v_lshlrev_b32 v11, 9, v7")
    A("v_lshl_add_u32 v11, v6, 4, v11")
    A("v_lshlrev_b32 v12, 4, v7")
    A("v_lshrrev_b32 v8, 3, v5")
    A("v_lshrrev_b32 v9, 1, v4")
    A("v_lshl_add_u32 v8, v8, 1, v9")
    A("v_and_b32 v9, 7, v5")
    A("v_lshlrev_b32 v13, 5, v9")
    A("v_and_b32 v9, 1, v4")
    A("v_lshl_add_u32 v13, v9, 4, v13")
    A("v_lshl_add_u32 v13, v8, 8, v13")
    A("v_lshlrev_b32 v14, 5, v5")
    A("v_lshl_add_u32 v14, v4, 4, v14")
    A("s_mul_i32 s64, s2, 1280")
    A(f"s_add_u32 s64, s64, {AP_OFF}")
    A("s_mov_b32 s66, 0x00ff00ff")
    A("s_mov_b32 s67, 0")
    A("s_waitcnt vmcnt(0)")
    stamp(4)
    if notail:
        endp()
    A("s_barrier")
    stamp(5)
    for w in range(4):
        A(f"ds_read_b64 {vr(P+16+2*w,2)}, v10 offset:{L_PART+576*w+512}")
    for w in range(4):
        A(f"ds_read_b128 {vr(P+4*w,4)}, v2 offset:{L_PART+576*w}")
    M = 2 + 4
    A("s_waitcnt lgkmcnt(4)")
    A(f"v_max3_f32 v8, v{P+16}, v{P+18}, v{P+20}")
    A(f"v_max_f32 v8, v8, v{P+22}")
    for w in range(4):
        A(f"v_sub_f32 v{P+16+2*w}, v{P+16+2*w}, v8")
    for w in range(4):
        A(f"v_mul_f32 v{P+16+2*w}, {fl(LOG2E)}, v{P+16+2*w}")
    for w in range(4):
        A(f"v_exp_f32 v{P+16+2*w}, v{P+16+2*w}")
    A(f"v_mov_b32 v{GO+4}, v8")
    A(f"v_mov_b32 v{GO+5}, s30")
    A(f"v_mov_b32 v{GO+7}, s31")
    A(f"v_mul_f32 v{GO+6}, v{P+16}, v{P+17}")
    for w in range(1, 4):
        A(f"v_fmac_f32 v{GO+6}, v{P+16+2*w}, v{P+17+2*w}")
    A("s_waitcnt lgkmcnt(0)")
    for r in range(4):
        A(f"v_mul_f32 v{GO+r}, v{P+16}, v{P+r}")
    for w in range(1, 4):
        for r in range(4):
            A(f"v_fmac_f32 v{GO+r}, v{P+16+2*w}, v{P+4*w+r}")
    pack_tags(GO, VFF2)
    A("s_mov_b32 exec_hi, 0")
    A(f"buffer_store_dwordx4 {vr(GO,4)}, v2, s[36:39], s60 offen sc1")
    A("s_mov_b64 exec, 1")
    A(f"buffer_store_dwordx4 {vr(GO+4,4)}, v10, s[36:39], s62 offen sc1")
    A("s_mov_b64 exec, -1")
    stamp(6)
    GI = P
    A("L_H2_POLL:")
    A(f"buffer_load_dwordx4 {vr(GI+4,4)}, v12, s[36:39], s61 offen sc1")
    A(f"buffer_load_dwordx4 {vr(GI,4)}, v11, s[36:39], s63 offen sc1")
    A("s_waitcnt vmcnt(0)")
    strip_tags(8, GI, True)
    A("v_and_b32 v8, 0xff, v8")
    tagcheck(8, GI + 4, False)
    A("v_cmp_ne_u32 vcc, 0, v8")
    poll_branch("L_H2_POLL")
    stamp(7)
    mm, ll = GI + 4, GI + 6
    A(f"v_mov_b32 v8, v{mm}")
    oct_reduce([8], "v_max_f32")
    A(f"v_sub_f32 v8, v{mm}, v8")
    A(f"v_mul_f32 v8, {fl(LOG2E)}, v8")
    A("v_exp_f32 v8, v8")
    A(f"v_mul_f32 v9, v8, v{ll}")
    for r in range(4):
        A(f"v_mul_f32 v{GI+r}, v8, v{GI+r}")
    oct_reduce([9, GI, GI + 1, GI + 2, GI + 3])
    A("v_rcp_f32 v9, v9")
    for r in range(4):
        A(f"v_mul_f32 v{GI+r}, v{GI+r}, v9")
    for r in range(4):
        A(f"v_cvt_pk_bf16_f32 v{GI+r}, v{GI+r}, v{GI+r}")
    for u in range(4):
        for r in range(4):
            A(f"v_and_b32 v{AS2+4*u+r}, v{GI+u}, v{MK2+r}")
    for u in range(4):
        for v in range(5):
            c = "0" if u == 0 else vr(DA + 4 * v, 4)
            A(f"v_mfma_f32_16x16x32_bf16 {vr(DA+4*v,4)}, {vr(AS2+4*u,4)}, {vr(WO+4*(u*5+v),4)}, {c}")
    for a in (0, 2):
        for r in range(4):
            A(f"v_permlane32_swap_b32 v{DA+4*a+r}, v{DA+4*(a+1)+r}")
    for a in (0, 2):
        for r in range(4):
            A(f"v_add_f32_dpp v{DA+4*a+r}, v{DA+4*(a+1)+r}, v{DA+4*a+r} row_ror:8 {DPPM}")
    for r in range(4):
        A(f"v_mov_b32_dpp v{DA+r}, v{DA+8+r} row_ror:8 row_mask:0xf bank_mask:0xc")
    pack_tags(DA, VFF2)
    A(f"buffer_store_dwordx4 {vr(DA,4)}, v13, s[36:39], s64 offen sc1")
    pair_sum([DA + 16 + r for r in range(4)], [DA + 4 + r for r in range(4)])
    pack_tags(DA + 16, VFF2)
    A("s_mov_b64 exec, s[66:67]")
    A(f"buffer_store_dwordx4 {vr(DA+16,4)}, v14, s[36:39], s64 offen offset:1024 sc1")
    stamp(3)
    endp()

    C("---- streamers ----")
    A("L_STREAM:")
    stamp(5)
    if sprio:
        A(f"s_setprio {sprio}")
    RB = 64
    NS = NP
    AQ = 8
    MKS = 24
    DSC = 28
    DO = 32
    PA = 36
    vS, vT, vP, vP2s, vP2, vL, vM, vT2 = 44, 45, 46, 47, 48, 49, 50, 51
    vK, vV = 2, 3
    vTK, vZ, vOne = 56, 57, 58
    assert RB + 32 * NS <= 256
    A("s_lshl_b32 s56, s32, 22")
    A("s_add_u32 s40, s6, s56")
    A("s_addc_u32 s41, s7, 0")
    A(f"s_mov_b32 s42, {4<<20}")
    A("s_mov_b32 s43, 0x20000")
    A("s_add_u32 s44, s8, s56")
    A("s_addc_u32 s45, s9, 0")
    A(f"s_mov_b32 s46, {4<<20}")
    A("s_mov_b32 s47, 0x20000")
    A(f"v_lshlrev_b32 v{vK}, 8, v5")
    A(f"v_lshl_add_u32 v{vK}, v4, 4, v{vK}")
    A(f"v_lshlrev_b32 v{vV}, 4, v0")
    A(f"s_mul_i32 s72, s33, {(128 if (pmap or pfake) else NLOC)*4096}")
    A("s_sub_u32 s57, s3, 4")
    A("s_lshl_b32 s57, s57, 12")
    A("s_add_u32 s56, s72, s57")
    SOFF = 60

    def req_ticket():
        A("s_mov_b64 exec, 1")
        A(f"ds_add_rtn_u32 v{vTK}, v{vZ}, v{vOne} offset:{L_FLAG+8}")
        A("s_mov_b64 exec, -1")

    def slot_regs(slot):
        return RB + 32 * slot

    def loads(slot):
        b = slot_regs(slot)
        for kk in range(4):
            A(f"buffer_load_dwordx4 {vr(b+4*kk,4)}, v{vK}, s[40:43], s{SOFF+slot} offen offset:{64*kk}{kp}")
        for u in range(4):
            A(f"buffer_load_dwordx4 {vr(b+16+4*u,4)}, v{vV}, s[44:47], s{SOFF+slot} offen offset:{1024*u}{kp}")

    iu = [0]

    def issue_static(slot):
        A(f"s_mov_b32 s{SOFF+slot}, s56")
        A("s_add_u32 s56, s56, 16384")
        loads(slot)

    def issue(slot):
        A("s_waitcnt lgkmcnt(0)")
        A(f"v_readfirstlane_b32 s58, v{vTK}")
        A("s_lshl_b32 s59, s58, 12")
        A("s_add_u32 s59, s59, s72")
        A(f"s_cmp_lt_u32 s58, {NLOC}")
        if pool:
            iu[0] += 1
            u = iu[0]
            A(f"s_cbranch_scc1 L_TK_{u}")
            A("s_lshl_b32 s58, s58, 2")
            A(f"v_mov_b32 v{vT}, s58")
            A("s_mov_b32 s82, 0")
            A(f"L_TB_{u}:")
            A(f"ds_read_b32 v{vT2}, v{vT} offset:{L_TAB-4*NLOC}")
            A("s_waitcnt lgkmcnt(0)")
            A(f"v_readfirstlane_b32 s59, v{vT2}")
            A("s_cmp_lg_u32 s59, -1")
            A(f"s_cbranch_scc1 L_TK_{u}")
            if diag:
                A("s_add_u32 s79, s79, 1")
            A("s_add_u32 s82, s82, 1")
            A(f"s_cmp_lt_u32 s82, {POLL_MAX*16}")
            A(f"s_cbranch_scc1 L_TB_{u}")
            A(f"L_TK_{u}:")
            A(f"s_mov_b32 s{SOFF+slot}, s59")
        else:
            A(f"s_cselect_b32 s{SOFF+slot}, s59, {OOB}")
        loads(slot)
        req_ticket()

    if diag >= 2:
        A("v_mov_b32 v63, 0")
        A("s_mov_b32 m0, 0")
        A("s_mov_b32 s76, 0")
    for k in range(min(b0early, DS)):
        issue_static(k)
    stamp(7)
    A("s_barrier")
    stamp(0)
    for k in range(min(b0early, DS), min(DS, NP)):
        issue_static(k)
    A(f"v_mov_b32 v{vZ}, 0")
    A(f"v_mov_b32 v{vOne}, 1")
    sel_masks(MKS, 0, vT, vT2, True)
    A(f"v_mov_b32 v{vM}, 0xff800000")
    A(f"v_mov_b32 v{vL}, 0")
    for r in range(4):
        A(f"v_mov_b32 v{DO+r}, 0")
    A("v_lshlrev_b32 v6, 4, v4")
    A("s_mov_b32 s81, 0")
    if diag:
        A("s_mov_b32 s79, 0")
    for k in range(DS, NP):
        A("s_cmp_lg_u32 s81, 0")
        A(f"s_cbranch_scc1 L_FILL_{k}")
        A(f"s_waitcnt vmcnt({PER*(DS-1)})")
        read_flag(vT, 81)
        A(f"L_FILL_{k}:")
        issue_static(k)
    stamp(1)
    wait_flag("L_S_QW", vT, 81)
    for kk in range(4):
        A(f"ds_read_b128 {vr(AQ+4*kk,4)}, v6 offset:{L_Q+64*kk}")
    A("s_waitcnt lgkmcnt(0)")
    req_ticket()
    stamp(2)

    uid = [0]

    def step(slot, wait, issue_slot):
        uid[0] += 1
        u = uid[0]
        b = slot_regs(slot)
        A(f"s_cmp_ge_u32 s{SOFF+slot}, {OOB}")
        A("s_cbranch_scc1 L_SDONE")
        A(f"s_waitcnt vmcnt({wait})")
        if diag >= 2:
            A("s_waitcnt lgkmcnt(0)")
            A("v_writelane_b32 v63, s76, m0")
            A("s_memrealtime s[76:77]")
            A("s_add_u32 m0, m0, 1")
        if issue_slot is not None:
            issue(issue_slot)
        for kk in range(4):
            c = "0" if kk == 0 else vr(DSC, 4)
            A(f"v_mfma_f32_16x16x32_bf16 {vr(DSC,4)}, {vr(AQ+4*kk,4)}, {vr(b+4*kk,4)}, {c}")
        rbf(vT, DSC)
        A(f"v_mul_f32 v{vT}, {fl(SCALE)}, v{vT}")
        rbf(vS, vT)
        A(f"v_cmp_gt_f32 vcc, v{vS}, v{vM}")
        A(f"s_cbranch_vccz L_NORESC_{u}")
        A(f"v_max_f32_dpp v{vT}, v{vS}, v{vS} row_ror:8 {DPPM}")
        for s in (4, 2, 1):
            A(f"v_max_f32_dpp v{vT}, v{vT}, v{vT} row_ror:{s} {DPPM}")
        A(f"v_max_f32 v{vT}, v{vT}, v{vM}")
        A(f"v_sub_f32 v{vT2}, v{vM}, v{vT}")
        A(f"v_mul_f32 v{vT2}, {fl(LOG2E)}, v{vT2}")
        A(f"v_exp_f32 v{vT2}, v{vT2}")
        A(f"v_mov_b32 v{vM}, v{vT}")
        A(f"v_mul_f32 v{vL}, v{vL}, v{vT2}")
        for r in range(4):
            A(f"v_mul_f32 v{DO+r}, v{DO+r}, v{vT2}")
        A(f"L_NORESC_{u}:")
        A(f"v_sub_f32 v{vT}, v{vS}, v{vM}")
        A(f"v_mul_f32 v{vT}, {fl(LOG2E)}, v{vT}")
        A(f"v_exp_f32 v{vP}, v{vT}")
        A(f"v_cvt_pk_bf16_f32 v{vP2s}, v{vP}, v{vP}")
        A(f"v_cvt_pk_bf16_f32 v{vP2}, v{vP}, v{vP}")
        A(f"v_add_f32 v{vL}, v{vL}, v{vP}")
        A(f"v_mov_b32_dpp v{vP2}, v{vP2s} row_shl:1 row_mask:0x2 bank_mask:0xf")
        A(f"v_mov_b32_dpp v{vP2}, v{vP2s} row_shl:2 row_mask:0x4 bank_mask:0xf")
        A(f"v_mov_b32_dpp v{vP2}, v{vP2s} row_shl:3 row_mask:0x8 bank_mask:0xf")

        def ands(uu):
            a = PA + 4 * (uu & 1)
            for r in range(4):
                A(f"v_and_b32_dpp v{a+r}, v{vP2}, v{MKS+r} row_newbcast:{4*uu} {DPPM}")

        def pv(uu):
            a = PA + 4 * (uu & 1)
            A(f"v_mfma_f32_16x16x32_bf16 {vr(DO,4)}, {vr(a,4)}, {vr(b+16+4*uu,4)}, {vr(DO,4)}")
        ands(0); ands(1); pv(0); ands(2); pv(1); ands(3); pv(2); pv(3)

    RS = DIST + 1
    assert RS <= NP
    first = NP - RS
    for n in range(first):
        step(n, PER * (NP - 1 - n), None)
    step(first, PER * (RS - 1), None)
    A("L_SLOOP:")
    for i in range(RS):
        cons = first + (i + 1) % RS
        free = first + i % RS
        step(cons, PER * (DIST - 1), free)
    A("s_branch L_SLOOP")

    A("L_SDONE:")
    stamp(3)
    if diag and pool:
        A("s_lshl_b32 s58, s2, 2")
        A("s_add_u32 s58, s58, s3")
        A("s_lshl_b32 s58, s58, 2")
        A("s_add_u32 s58, s58, 1008")
        A("v_mov_b32 v60, s58")
        A("v_mov_b32 v61, s79")
        A("s_mov_b64 exec, 1")
        A("global_store_dword v60, v61, s[26:27]")
        A("s_mov_b64 exec, -1")
    if diag >= 2:
        A("s_waitcnt vmcnt(0) lgkmcnt(0)")
        A("v_writelane_b32 v63, s76, m0")
        A("s_lshl_b32 s58, s2, 2")
        A("s_add_u32 s58, s58, s3")
        A("s_sub_u32 s58, s58, 4")
        A("s_lshl_b32 s58, s58, 8")
        A(f"s_add_u32 s58, s58, {TS2_OFF}")
        A("v_lshlrev_b32 v62, 2, v0")
        A("buffer_store_dword v63, v62, s[36:39], s58 offen")
    row_sum(vL)
    A("v_lshlrev_b32 v6, 5, v5")
    A("v_lshl_add_u32 v6, v4, 4, v6")
    A("s_sub_u32 s58, s3, 4")
    A("s_mul_i32 s58, s58, 576")
    A("v_add_u32 v6, s58, v6")
    A("v_mov_b32 v7, s58")
    A(f"v_mov_b32 v52, v{vM}")
    A(f"v_mov_b32 v53, v{vL}")
    A("s_mov_b32 exec_hi, 0")
    A(f"ds_write_b128 v6, {vr(DO,4)} offset:{L_PART}")
    A("s_mov_b64 exec, 1")
    A(f"ds_write_b64 v7, v[52:53] offset:{L_PART+512}")
    A("s_mov_b64 exec, -1")
    A("s_waitcnt lgkmcnt(0)")
    A("s_barrier")
    stamp(4)
    flush_stamps()
    A("L_END:")
    A("s_endpgm")

    L = [x for x in L if x is not None]
    out, nins = hz.fix(L)
    out.append('.section .rodata,"a"')
    out.append(".p2align 6")
    out.append(f".amdhsa_kernel {NAME}")
    out.append("  .amdhsa_next_free_vgpr 256")
    out.append("  .amdhsa_next_free_sgpr 102")
    out.append("  .amdhsa_accum_offset 256")
    out.append("  .amdhsa_group_segment_fixed_size 0")
    out.append("  .amdhsa_kernarg_size 104")
    out.append("  .amdhsa_user_sgpr_count 2")
    out.append("  .amdhsa_user_sgpr_kernarg_segment_ptr 1")
    out.append("  .amdhsa_system_sgpr_workgroup_id_x 1")
    out.append(".end_amdhsa_kernel")
    return "\n".join(out) + "\n"


def parse_spec(spec):
    kw = {}
    if spec:
        for it in spec.split(","):
            k, v = it.split("=")
            try:
                v = int(v)
            except ValueError:
                v = v.replace("+", " ")
            kw[k] = v
    return kw


if __name__ == "__main__":
    spec = sys.argv[1] if len(sys.argv) > 1 else ""
    sys.stdout.write(gen(**parse_spec(spec)))
```

```python
import sys, struct, os
sys.path.insert(0, os.path.dirname(os.path.abspath(__file__)))
import hz

NAME = "parallel_sum__gqa_block_cached__mixer_channel_mlp__decode_kernel"

WS_SIZE = 0x400000
R_OFF = 0x0
QP_OFF = 0x10000
ZP_OFF = 0x30000
OP_OFF = 0x40000
ML_OFF = 0x60000
AP_OFF = 0x70000
BP_OFF = 0xC0000
CNT_OFF = 0x110000
TS_OFF = 0x180000
TS2_OFF = 0x200000
TAG0 = 0x5BD1E995
TAG1 = 0x2545F491

L_XN2 = 0
L_Y2 = 2560
L_Q = 5120
L_PART = 5376
L_HH2 = 7680
L_FLAG = 7936
L_TAB = 8192

OOB = 0x40000000
POLL_MAX = 200000
NFIN = 80


def f2u(x):
    return struct.unpack("<I", struct.pack("<f", x))[0]


def fl(x):
    return "0x%08x" % f2u(x)


LOG2E = 1.4426950408889634
SCALE = 128 ** -0.5


def gen(NP=6, DIST=2, DS=2, kpol="nt", wpol="nt", diag=0, header=True, b0early=0, pubwait=3,
        noq=0, noh=0, h1off=0, h2off=0, notail=0, sprio=0, hprio=0, qprio=0,
        pool=0, NLOC=112, CH=2, KQ=3, LOOK=7, zmap2=0, mprio=0, pmap=0, pfake=0, satom=0, h1stop=9, now1=0, now2=0, mlp5=0, w2pol=None, cst=256, n1=0, xge=0):
    L = []
    A = L.append

    def C(s):
        L.append("; " + s)

    if not pool:
        NLOC = 128
    POOL = 8 * (128 - NLOC)
    assert LOOK >= KQ * CH or not pool or satom
    PER = 8
    kp = (" " + kpol) if kpol else ""
    wp = (" " + wpol) if wpol else ""
    w2p = wp if w2pol is None else ((" " + w2pol) if w2pol != "def" else "")
    NC = 5 if mlp5 else 8
    R1 = 640 // NC
    ZST = 2048
    CB = 512 if mlp5 else 384

    def srd(base, lo, hi, size):
        A(f"s_mov_b32 s{base}, s{lo}")
        A(f"s_mov_b32 s{base+1}, s{hi}")
        A(f"s_mov_b32 s{base+2}, {size}")
        A(f"s_mov_b32 s{base+3}, 0x20000")

    def vr(a, n):
        return f"v[{a}:{a+n-1}]"

    DPPM = "row_mask:0xf bank_mask:0xf"

    def rbf(dst, src):
        A(f"v_cvt_pk_bf16_f32 v{dst}, v{src}, v{src}")
        A(f"v_and_b32 v{dst}, 0xffff0000, v{dst}")

    def row_sum(v, steps=(8, 4, 2, 1), op="v_add_f32"):
        for s in steps:
            A(f"{op}_dpp v{v}, v{v}, v{v} row_ror:{s} {DPPM}")

    def oct_reduce(regs, op="v_add_f32"):
        for mod in ("quad_perm:[1,0,3,2]", "quad_perm:[2,3,0,1]", "row_half_mirror"):
            for v in regs:
                A(f"{op}_dpp v{v}, v{v}, v{v} {mod} {DPPM}")

    def swap_add(v, t, which, op="v_add_f32"):
        A(f"v_mov_b32 v{t}, v{v}")
        A(f"v_permlane{which}_swap_b32 v{v}, v{t}")
        A(f"{op} v{v}, v{v}, v{t}")

    def swap_add_n(regs, tmps, which):
        for v, t in zip(regs, tmps):
            A(f"v_mov_b32 v{t}, v{v}")
        for v, t in zip(regs, tmps):
            A(f"v_permlane{which}_swap_b32 v{v}, v{t}")
        for v, t in zip(regs, tmps):
            A(f"v_add_f32 v{v}, v{v}, v{t}")

    def pair_sum(regs, tmps):
        for v, t in zip(regs, tmps):
            A(f"v_mov_b32 v{t}, v{v}")
        for v, t in zip(regs, tmps):
            A(f"v_permlane32_swap_b32 v{v}, v{t}")
        for v, t in zip(regs, tmps):
            A(f"v_add_f32_dpp v{v}, v{t}, v{v} row_ror:8 {DPPM}")

    def wave_sum(v, t):
        row_sum(v)
        swap_add(v, t, 16)
        swap_add(v, t, 32)

    def stamp(slot):
        if diag:
            A(f"s_memrealtime s[{84+2*slot}:{85+2*slot}]")

    def flush_stamps(sv=248):
        if not diag:
            return
        A("s_mov_b64 exec, -1")
        A("s_waitcnt vmcnt(0) lgkmcnt(0)")
        A(f"s_lshl_b32 s82, s2, 9")
        A(f"s_lshl_b32 s83, s3, 6")
        A("s_add_u32 s82, s82, s83")
        A(f"s_add_u32 s82, s82, {TS_OFF}")
        A(f"v_mov_b32 v{sv+4}, 0")
        A("s_mov_b64 exec, 1")
        for k in range(4):
            for r in range(4):
                A(f"v_mov_b32 v{sv+r}, s{84+4*k+r}")
            A(f"buffer_store_dwordx4 v[{sv}:{sv+3}], v{sv+4}, s[36:39], s82 offen offset:{16*k}")
            A("s_nop 1")
        A("s_mov_b64 exec, -1")

    def endp():
        flush_stamps()
        A("s_endpgm")

    def ln(xin, tmp):
        t0, t1, t2, t3, t4, t5 = [tmp + i for i in range(6)]
        A(f"v_add_f32 v{t0}, v{xin}, v{xin+1}")
        for i in range(2, 10):
            A(f"v_add_f32 v{t0}, v{t0}, v{xin+i}")
        wave_sum(t0, t1)
        A(f"v_mul_f32 v{t0}, {fl(1.0/640.0)}, v{t0}")
        A(f"v_sub_f32 v{t2}, v{xin}, v{t0}")
        A(f"v_mul_f32 v{t3}, v{t2}, v{t2}")
        for i in range(1, 10):
            A(f"v_sub_f32 v{t2}, v{xin+i}, v{t0}")
            A(f"v_fmac_f32 v{t3}, v{t2}, v{t2}")
        wave_sum(t3, t1)
        A(f"v_mul_f32 v{t3}, {fl(1.0/640.0)}, v{t3}")
        rbf(t3, t3)
        A(f"v_add_f32 v{t3}, {fl(1e-5)}, v{t3}")
        rbf(t3, t3)
        A(f"v_sqrt_f32 v{t3}, v{t3}")
        rbf(t0, t0)
        rbf(t3, t3)
        A(f"v_rcp_f32 v{t3}, v{t3}")
        for i in range(0, 10, 2):
            A(f"v_sub_f32 v{t1}, v{xin+i}, v{t0}")
            A(f"v_sub_f32 v{t2}, v{xin+i+1}, v{t0}")
            A(f"v_cvt_pk_bf16_f32 v{t4}, v{t1}, v{t2}")
            A(f"v_lshlrev_b32 v{t1}, 16, v{t4}")
            A(f"v_and_b32 v{t2}, 0xffff0000, v{t4}")
            A(f"v_mul_f32 v{t1}, v{t1}, v{t3}")
            A(f"v_mul_f32 v{t2}, v{t2}, v{t3}")
            A(f"v_cvt_pk_bf16_f32 v{xin+i}, v{t1}, v{t1}")
            A(f"v_cvt_pk_bf16_f32 v{xin+i+1}, v{t2}, v{t2}")

    def unpack_pairs(src, dst, n):
        for k in range(n):
            A(f"v_lshlrev_b32 v{dst+2*k}, 16, v{src+k}")
            A(f"v_and_b32 v{dst+2*k+1}, 0xffff0000, v{src+k}")

    def sel_masks(m, lane, t0, t1, eight_rows):
        A(f"v_and_b32 v{t0}, 1, v{lane}")
        A(f"v_cmp_eq_u32 vcc, 1, v{t0}")
        A(f"v_mov_b32 v{t0}, 0x0000ffff")
        A(f"v_mov_b32 v{t1}, 0xffff0000")
        A(f"v_cndmask_b32 v{t0}, v{t0}, v{t1}, vcc")
        A(f"v_and_b32 v{t1}, {15 if eight_rows else 7}, v{lane}")
        A(f"v_lshrrev_b32 v{t1}, 1, v{t1}")
        for r in range(4):
            A(f"v_cmp_eq_u32 vcc, {r}, v{t1}")
            A(f"v_cndmask_b32 v{m+r}, 0, v{t0}, vcc")

    def sel_gemv(n, vals, W, aset, masks, D, D2, tmp, waits=None):
        for t in range(n):
            if waits and t in waits:
                A(f"s_waitcnt vmcnt({waits[t]})")
            a = aset + 4 * (t & 1)
            d = D if (t & 1) == 0 else D2
            for r in range(4):
                A(f"v_and_b32 v{a+r}, v{vals+t}, v{masks+r}")
            c = "0" if t < 2 else vr(d, 4)
            A(f"v_mfma_f32_16x16x32_bf16 {vr(d,4)}, {vr(a,4)}, {vr(W+4*t,4)}, {c}")
        for r in range(4):
            A(f"v_add_f32 v{D+r}, v{D+r}, v{D2+r}")

    def tagcheck(acc, g, first):
        if first:
            A(f"v_xor_b32 v{acc}, s30, v{g+1}")
        else:
            A(f"v_bitop3_b32 v{acc}, v{acc}, v{g+1}, s30 bitop3:0xf6")
        A(f"v_bitop3_b32 v{acc}, v{acc}, v{g+3}, s31 bitop3:0xf6")

    def pack_tags(g, vff):
        for r in range(4):
            A(f"v_bfi_b32 v{g+r}, v{vff}, s{72+r}, v{g+r}")

    def strip_tags(acc, g, first):
        for r in range(4):
            A(f"v_xor_b32 v{g+r}, s{72+r}, v{g+r}")
        if first:
            A(f"v_or3_b32 v{acc}, v{g}, v{g+1}, v{g+2}")
            A(f"v_or_b32 v{acc}, v{acc}, v{g+3}")
        else:
            A(f"v_or3_b32 v{acc}, v{acc}, v{g}, v{g+1}")
            A(f"v_or3_b32 v{acc}, v{acc}, v{g+2}, v{g+3}")

    def poll_branch(label):
        A(f"s_cbranch_vccz {label}_OK")
        A("s_add_u32 s80, s80, 1")
        A(f"s_cmp_lt_u32 s80, {POLL_MAX}")
        A(f"s_cbranch_scc1 {label}")
        A(f"{label}_OK:")

    def read_flag(vt, sdst):
        A(f"v_mov_b32 v{vt}, 0")
        A(f"ds_read_b32 v{vt}, v{vt} offset:{L_FLAG}")
        A("s_waitcnt lgkmcnt(0)")
        A(f"v_readfirstlane_b32 s{sdst}, v{vt}")

    def wait_flag(label, vt=2, sdst=81):
        A("s_mov_b32 s82, 0")
        A(f"{label}:")
        read_flag(vt, sdst)
        A(f"s_cmp_lg_u32 s{sdst}, 0")
        A(f"s_cbranch_scc1 {label}_OK")
        A("s_add_u32 s82, s82, 1")
        A(f"s_cmp_lt_u32 s82, {POLL_MAX*16}")
        A(f"s_cbranch_scc1 {label}")
        A(f"{label}_OK:")

    def get_tags(compact=True):
        A("s_waitcnt lgkmcnt(0)")
        A(f"s_add_u32 s30, s30, {TAG0}")
        A(f"s_add_u32 s31, s31, {TAG1}")
        if compact:
            A("s_and_b32 s72, s30, 0xff")
            A("s_bfe_u32 s73, s30, 0x80008")
            A("s_bfe_u32 s74, s30, 0x80010")
            A("s_lshr_b32 s75, s30, 24")

    if header:
        hdr = open("parallel_sum__gqa_block_cached__mixer_channel_mlp__decode.s.ref").read().split("\n")
        for ln_ in hdr:
            if ln_.startswith("; @launch") or ln_.startswith(".amdgcn_target"):
                break
            if ln_.startswith("; Override") or ln_.startswith("; grid="):
                continue
            L.append(ln_)
    LDS_SIZE = 10240 if pool else 8192
    L.append(f"; @launch grid=(256,1,1) block=(512,1,1) lds={LDS_SIZE}")
    L.append('.amdgcn_target "amdgcn-amd-amdhsa--gfx950"')
    L.append(".text")
    L.append(f".globl {NAME}")
    L.append(".p2align 8")
    L.append(f".type {NAME},@function")
    L.append(f"{NAME}:")

    C("256 workgroups x 8 waves. waves 0..3 helpers, waves 4..7 stream K/V")
    if diag:
        A("s_memrealtime s[96:97]")
        for r in list(range(84, 96)) + [98, 99]:
            A(f"s_mov_b32 s{r}, 0x5a5a5a5a")
    A("s_cmp_ge_u32 s2, 256")
    A("s_cbranch_scc1 L_END")
    A("s_load_dwordx16 s[4:19], s[0:1], 0")
    A("s_load_dwordx8 s[20:27], s[0:1], 64")
    A("s_load_dwordx2 s[28:29], s[0:1], 96")
    A("v_lshrrev_b32 v1, 6, v0")
    A("v_and_b32 v0, 63, v0")
    A("v_readfirstlane_b32 s3, v1")
    A("s_lshr_b32 s32, s2, 3")
    A("s_and_b32 s33, s2, 7")
    A("v_lshrrev_b32 v4, 4, v0")
    A("v_and_b32 v5, 15, v0")
    A("s_waitcnt lgkmcnt(0)")
    srd(36, 28, 29, WS_SIZE)
    A("s_cmp_ge_u32 s3, 4")
    A("s_cbranch_scc1 L_STREAM")
    A(f"s_load_dwordx2 s[30:31], s[28:29], {R_OFF}")
    A("s_mov_b32 s80, 0")
    A("s_cmp_eq_u32 s3, 1")
    A("s_cbranch_scc1 L_H1")
    A("s_cmp_eq_u32 s3, 2")
    A("s_cbranch_scc1 L_H2")
    A("s_cmp_eq_u32 s3, 3")
    A("s_cbranch_scc1 L_FIN")

    C("---- H0 ----")
    stamp(4)
    X = 10
    XF = 16
    T = 26
    MK = 32
    AS = 36
    D = 44
    D2 = 48
    VAL = 52
    G = 72
    W = 100
    srd(40, 4, 5, 1280)
    srd(44, 10, 11, 640 * 8192)
    A("v_lshlrev_b32 v2, 2, v0")
    for k in range(5):
        A(f"buffer_load_dword v{X+k}, v2, s[40:43], 0 offen offset:{256*k}")
    A("v_lshrrev_b32 v6, 3, v0")
    A("v_and_b32 v7, 7, v0")
    A(f"v_mul_u32_u24 v3, {20*8192}, v6")
    A("v_lshl_add_u32 v3, v7, 4, v3")
    if noq:
        A("s_barrier")
        A("v_mov_b32 v7, 0")
        A("v_mov_b32 v8, 1")
        A(f"ds_write_b32 v7, v8 offset:{L_FLAG}")
        endp()
    if qprio:
        A(f"s_setprio {qprio}")
    A("s_lshr_b32 s58, s33, 1")
    A("s_and_b32 s59, s33, 1")
    A(f"s_mul_i32 s56, s58, {160*8192}")
    A("s_lshl_b32 s57, s32, 8")
    A("s_add_u32 s56, s56, s57")
    A("s_lshl_b32 s57, s59, 7")
    A("s_add_u32 s56, s56, s57")
    for t in range(20):
        A(f"buffer_load_dwordx4 {vr(W+4*t,4)}, v3, s[44:47], s56 offen{wp}")
        if t < 19:
            A("s_add_u32 s56, s56, 8192")
    XW = 0
    if pool:
        XW = 1
        A(f"s_mul_i32 s70, s32, {cst}")
        A(f"s_add_u32 s70, s70, {CNT_OFF}")
        A("s_cmp_eq_u32 s33, 0")
        A(f"s_cselect_b32 s57, s70, {OOB}")
        A("v_mov_b32 v8, 0")
        A("s_mov_b64 exec, 1")
        A("buffer_store_dword v8, v8, s[36:39], s57 offen sc1")
        A("s_mov_b64 exec, -1")
    stamp(5)
    A("s_barrier")
    stamp(0)
    sel_masks(MK, 0, T, T + 1, False)
    A("v_mul_u32_u24 v7, 80, v6")
    A("v_lshlrev_b32 v6, 3, v0")
    A(f"s_mul_i32 s57, s58, 640")
    A("v_add_u32 v7, s57, v7")
    A(f"s_waitcnt vmcnt({20+XW})")
    unpack_pairs(X, XF, 5)
    ln(XF, T)
    for k in range(5):
        A(f"ds_write_b64 v6, {vr(XF+2*k,2)} offset:{L_XN2+512*k}")
    A("s_waitcnt lgkmcnt(0)")
    for i in range(5):
        A(f"ds_read_b128 {vr(VAL+4*i,4)}, v7 offset:{L_XN2+16*i}")
    get_tags(False)
    stamp(1)
    sel_gemv(20, VAL, W, AS, MK, D, D2, T, waits={0: 15+XW, 5: 10+XW, 10: 5+XW, 15: XW})
    pair_sum([D, D + 1, D + 2, D + 3], [T, T + 1, T + 2, T + 3])
    A(f"v_mov_b32_dpp v{D}, v{D+2} row_ror:8 row_mask:0xf bank_mask:0xc")
    A(f"v_mov_b32_dpp v{D+1}, v{D+3} row_ror:8 row_mask:0xf bank_mask:0xc")
    A("v_and_b32 v8, 7, v5")
    A("v_lshlrev_b32 v8, 6, v8")
    A("v_lshl_add_u32 v8, v4, 5, v8")
    A("v_lshrrev_b32 v9, 3, v5")
    A("v_lshl_add_u32 v8, v9, 4, v8")
    A("s_lshl_b32 s57, s32, 12")
    A("s_lshl_b32 s58, s58, 10")
    A("s_add_u32 s57, s57, s58")
    A("s_lshl_b32 s59, s59, 9")
    A("s_add_u32 s57, s57, s59")
    A(f"s_add_u32 s57, s57, {QP_OFF}")
    A(f"v_mov_b32 v{G}, v{D}")
    A(f"v_mov_b32 v{G+1}, s30")
    A(f"v_mov_b32 v{G+2}, v{D+1}")
    A(f"v_mov_b32 v{G+3}, s31")
    if pool:
        A("s_waitcnt vmcnt(0)")
    A("s_mov_b32 exec_hi, 0")
    A(f"buffer_store_dwordx4 {vr(G,4)}, v8, s[36:39], s57 offen sc1")
    A("s_mov_b64 exec, -1")
    stamp(2)
    A("v_lshlrev_b32 v9, 4, v0")
    A("s_lshl_b32 s58, s32, 12")
    A(f"s_add_u32 s58, s58, {QP_OFF}")
    if pubwait & 1:
        A("s_waitcnt vmcnt(0)")
    else:
        A("s_nop 1")
    A("L_H0_POLL:")
    for k in range(4):
        A(f"buffer_load_dwordx4 {vr(G+4*k,4)}, v9, s[36:39], s58 offen offset:{1024*k} sc1")
    A("s_waitcnt vmcnt(0)")
    for k in range(4):
        tagcheck(T, G + 4 * k, k == 0)
    A(f"v_cmp_ne_u32 vcc, 0, v{T}")
    poll_branch("L_H0_POLL")
    A(f"v_add_f32 v{T}, v{G}, v{G+4}")
    A(f"v_add_f32 v{T+1}, v{G+2}, v{G+6}")
    for k in range(2, 4):
        A(f"v_add_f32 v{T}, v{T}, v{G+4*k}")
        A(f"v_add_f32 v{T+1}, v{T+1}, v{G+4*k+2}")
    A(f"v_cvt_pk_bf16_f32 v{T}, v{T}, v{T+1}")
    A("v_lshlrev_b32 v6, 2, v0")
    A(f"ds_write_b32 v6, v{T} offset:{L_Q}")
    A("v_mov_b32 v7, 0")
    A("v_mov_b32 v8, 1")
    A("s_waitcnt lgkmcnt(0)")
    A(f"ds_write_b32 v7, v8 offset:{L_FLAG}")
    stamp(3)
    if pool:
        C("---- H0 continues as the manager of shared tiles ----")
        if mprio:
            A(f"s_setprio {mprio}")
        A("s_mov_b32 s60, 0")
        A("s_mov_b32 s61, 0")
        A("s_mov_b32 s82, 0")
        A("v_lshlrev_b32 v6, 2, v0")
        A(f"v_mov_b32 v9, {OOB}")
        A(f"s_mov_b32 s63, {POOL}")

        def m_issue(i):
            lab = f"L_M_SPIN_{i}"
            A(f"{lab}:")
            A(f"ds_read_b32 v2, v7 offset:{L_FLAG+8}")
            A("s_waitcnt lgkmcnt(0)")
            A("v_readfirstlane_b32 s62, v2")
            A(f"s_add_u32 s62, s62, {LOOK}")
            A(f"s_sub_u32 s62, s62, s60")
            A(f"s_cmp_ge_i32 s62, {NLOC+CH}")
            A(f"s_cbranch_scc1 {lab}_OK")
            A("s_add_u32 s82, s82, 1")
            A(f"s_cmp_lt_u32 s82, {POLL_MAX*16}")
            A(f"s_cbranch_scc1 {lab}")
            A(f"{lab}_OK:")

        def m_atomic(slot):
            A(f"v_mov_b32 v{16+slot}, {CH}")
            A("s_mov_b64 exec, 1")
            if pfake != 1:
                A(f"buffer_atomic_add v{16+slot}, v7, s[36:39], s70 offen sc0 sc1")
            A("s_mov_b64 exec, -1")
            A(f"s_add_u32 s60, s60, {CH}")

        lgch = CH.bit_length() - 1
        assert 1 << lgch == CH
        NP_ = 128 - NLOC

        def m_process(slot):
            if pfake:
                A("s_mov_b32 s62, s61")
                A("v_add_u32 v3, s62, v0")
                A(f"s_mul_i32 s64, s33, {128*4096}")
                A(f"s_add_u32 s64, s64, {NLOC*4096}")
                A("v_lshlrev_b32 v8, 12, v3")
                A("v_add_u32 v8, s64, v8")
                A(f"s_mov_b32 s63, {NP_}")
            elif pmap:
                A(f"v_readfirstlane_b32 s62, v{16+slot}")
                A("v_add_u32 v3, s62, v0")
                A(f"v_lshrrev_b32 v8, {lgch}, v3")
                A("v_and_b32 v10, 7, v8")
                A("v_lshrrev_b32 v8, 3, v8")
                A(f"v_lshlrev_b32 v8, {lgch}, v8")
                A(f"v_and_b32 v11, {CH-1}, v3")
                A("v_add_u32 v8, v8, v11")
                A("v_lshl_add_u32 v8, v10, 7, v8")
                A(f"v_add_u32 v8, {NLOC}, v8")
                A("v_lshlrev_b32 v8, 12, v8")
            else:
                A(f"v_readfirstlane_b32 s62, v{16+slot}")
                A("v_add_u32 v3, s62, v0")
                A("v_lshlrev_b32 v8, 12, v3")
                A(f"v_add_u32 v8, {8*NLOC*4096}, v8")
            A("v_cmp_gt_u32 vcc, s63, v3")
            A("v_cndmask_b32 v8, v9, v8, vcc")
            A(f"s_add_u32 s61, s61, {CH}")
            A(f"s_add_u32 s62, s62, {CH}")
            A(f"s_cmp_gt_u32 s62, {NP_ if pfake else POOL}")
            A(f"s_cselect_b64 exec, -1, {(1<<CH)-1}")
            A(f"ds_write_b32 v6, v8 offset:{L_TAB}")
            A("s_mov_b64 exec, -1")
            A(f"v_add_u32 v6, {4*CH}, v6")
            A("s_cbranch_scc1 L_M_DONE_X")

        if satom:
            A("s_add_u32 s66, s28, s70")
            A("s_addc_u32 s67, s29, 0")
            A("L_M_LOOP:")
            m_issue("S")
            if diag:
                A("s_cmp_lg_u32 s60, 0")
                A("s_cbranch_scc1 L_M_NOST")
                stamp(5)
                A("L_M_NOST:")
            A(f"s_sub_u32 s65, s62, {NLOC}")
            A("s_min_u32 s65, s65, 32")
            if n1:
                A("s_cmp_eq_u32 s60, 0")
                A(f"s_cselect_b32 s64, {n1}, 0")
                A("s_max_u32 s65, s65, s64")
            A("s_mov_b32 s64, s65")
            if pfake != 1:
                A("s_atomic_add s64, s[66:67], 0x0 glc")
            A("s_add_u32 s60, s60, s65")
            A("s_bfm_b64 s[68:69], s65, 0")
            A("s_waitcnt lgkmcnt(0)")
            if pfake:
                A("s_mov_b32 s64, s61")
                A("v_add_u32 v3, s64, v0")
                A(f"s_mul_i32 s62, s33, {128*4096}")
                A(f"s_add_u32 s62, s62, {NLOC*4096}")
                A("v_lshlrev_b32 v8, 12, v3")
                A("v_add_u32 v8, s62, v8")
                A(f"s_mov_b32 s63, {NP_}")
            elif pmap:
                A("v_add_u32 v3, s64, v0")
                A("v_and_b32 v10, 7, v3")
                A("v_lshrrev_b32 v8, 3, v3")
                A("v_lshl_add_u32 v8, v10, 7, v8")
                A(f"v_add_u32 v8, {NLOC}, v8")
                A("v_lshlrev_b32 v8, 12, v8")
            else:
                A("v_add_u32 v3, s64, v0")
                A("v_lshlrev_b32 v8, 12, v3")
                A(f"v_add_u32 v8, {8*NLOC*4096}, v8")
            A("v_cmp_gt_u32 vcc, s63, v3")
            A("v_cndmask_b32 v8, v9, v8, vcc")
            A("s_add_u32 s61, s61, s65")
            A("s_add_u32 s64, s64, s65")
            A(f"s_cmp_{'ge' if xge else 'gt'}_u32 s64, {NP_ if pfake else POOL}")
            A("s_cselect_b64 exec, -1, s[68:69]")
            A(f"ds_write_b32 v6, v8 offset:{L_TAB}")
            A("s_mov_b64 exec, -1")
            A("s_cbranch_scc1 L_M_DONE_X")
            A("s_lshl_b32 s65, s65, 2")
            A("v_add_u32 v6, s65, v6")
            A("s_branch L_M_LOOP")
        else:
            for i in range(KQ - 1):
                m_issue(f"P{i}")
                if i == 0:
                    stamp(5)
                m_atomic(i)
            A("L_M_LOOP:")
            for i in range(KQ):
                m_issue(i)
                m_atomic((KQ - 1 + i) % KQ)
                A(f"s_waitcnt vmcnt({KQ-1})")
                m_process(i % KQ)
            A("s_branch L_M_LOOP")
        A("L_M_DONE_X:")
        A("s_waitcnt vmcnt(0) lgkmcnt(0)")
        stamp(7)
        if diag:
            A("s_lshl_b32 s62, s2, 2")
            A("v_mov_b32 v2, s62")
            A("v_mov_b32 v3, s61")
            A("s_mov_b64 exec, 1")
            A("global_store_dword v2, v3, s[26:27]")
            A("s_mov_b64 exec, -1")
    endp()

    C("---- H1 ----")
    A("L_H1:")
    if hprio:
        A(f"s_setprio {hprio}")
    A("v_mov_b32 v2, 0")
    A(f"ds_write_b32 v2, v2 offset:{L_FLAG}")
    A(f"v_mov_b32 v3, {4*NP}")
    A(f"ds_write_b32 v2, v3 offset:{L_FLAG+8}")
    if pool:
        A("v_lshlrev_b32 v2, 4, v0")
        for r in range(4):
            A(f"v_mov_b32 v{8+r}, -1")
        for k in range(2):
            A(f"ds_write_b128 v2, v[8:11] offset:{L_TAB+1024*k}")
    A("s_waitcnt lgkmcnt(0)")
    A("s_barrier")
    if noh or h1off:
        endp()
    A("s_lshr_b32 s57, s2, 6")
    A("s_and_b32 s35, s32, 7")
    if mlp5:
        A("s_mul_i32 s57, s2, 135")
        A("s_add_u32 s58, s57, 135")
        A("s_lshr_b32 s57, s57, 8")
        A("s_lshr_b32 s58, s58, 8")
        A("s_cmp_eq_u32 s57, s58")
        A("s_cbranch_scc1 L_H1_EXIT")
        A("s_mul_i32 s34, s57, 52429")
        A("s_lshr_b32 s34, s34, 18")
        A("s_mul_i32 s58, s34, 5")
        A("s_sub_u32 s35, s57, s58")
    elif zmap2:
        A("s_lshl_b32 s34, s33, 2")
        A("s_add_u32 s34, s34, s57")
        A("s_cmp_lt_u32 s33, 3")
        A("s_cbranch_scc1 L_H1_MLP")
        A("s_sub_u32 s58, s57, s33")
        A("s_add_u32 s58, s58, 3")
        A("s_and_b32 s58, s58, 3")
        A("s_mul_i32 s34, s33, 3")
        A("s_add_u32 s34, s34, s58")
        A("s_add_u32 s34, s34, 2")
        A("s_cmp_eq_u32 s58, 0")
        A("s_cbranch_scc1 L_H1_EXIT")
    else:
        A("s_mul_i32 s34, s33, 3")
        A("s_add_u32 s34, s34, s57")
        A("s_cmp_lt_u32 s57, 3")
        A("s_cbranch_scc1 L_H1_MLP")
        A("s_add_u32 s34, s33, 24")
        A("s_cmp_ge_u32 s33, 3")
        A("s_cbranch_scc1 L_H1_EXIT")
    A("L_H1_MLP:")
    get_tags()
    wait_flag("L_H1_QW")
    stamp(0)
    N1 = R1 // 8
    W1 = 100
    W2 = W1 + 4 * N1
    B1 = 14
    VFF = 9
    srd(44, 16, 17, 640 * 3456)
    srd(48, 20, 21, 1728 * 1280)
    srd(52, 18, 19, 3456)
    A("v_lshlrev_b32 v6, 3, v0")
    for k in range(5):
        A(f"ds_read_b64 {vr(XF+2*k,2)}, v6 offset:{L_XN2+512*k}")
    A("v_bfe_u32 v10, v0, 3, 1")
    A("v_and_b32 v7, 7, v0")
    A(f"v_mul_u32_u24 v8, {2*N1}, v4")
    A(f"v_mad_u32_u24 v8, v10, {N1}, v8")
    A(f"v_mul_u32_u24 v3, 3456, v8")
    A("v_lshl_add_u32 v3, v7, 4, v3")
    A(f"s_mul_i32 s56, s35, {R1*3456}")
    A("s_lshl_b32 s57, s34, 7")
    A("s_add_u32 s56, s56, s57")
    if now1:
        A(f"v_mov_b32 v3, {OOB}")
    for t in range(N1):
        A(f"buffer_load_dwordx4 {vr(W1+4*t,4)}, v3, s[44:47], s56 offen{wp}")
        if t < N1 - 1:
            A("s_add_u32 s56, s56, 3456")
    A("v_lshlrev_b32 v11, 3, v5")
    A(f"buffer_load_dwordx2 {vr(B1,2)}, v11, s[52:55], s57 offen")
    A(f"v_mul_u32_u24 v3, {16*1280}, v4")
    A("v_lshl_add_u32 v3, v5, 4, v3")
    A(f"v_mov_b32 v11, {OOB}")
    if not mlp5:
        A("v_cmp_gt_u32 vcc, 10, v5")
        A("v_cndmask_b32 v3, v11, v3, vcc")
    if now2:
        A("v_mov_b32 v3, v11")
    A(f"s_mul_i32 s56, s34, {64*1280}")
    A(f"s_mul_i32 s57, s35, {1280//NC}")
    A("s_add_u32 s56, s56, s57")
    for t in range(16):
        A(f"buffer_load_dwordx4 {vr(W2+4*t,4)}, v3, s[48:51], s56 offen{w2p}")
        if t < 15:
            A("s_add_u32 s56, s56, 1280")
    sel_masks(MK, 0, T, T + 1, False)
    A(f"s_mul_i32 s57, s35, {R1*4}")
    A("v_lshlrev_b32 v8, 2, v8")
    A("v_add_u32 v8, s57, v8")
    A(f"v_mov_b32 v{VFF}, 0xff")
    A("s_waitcnt lgkmcnt(0)")
    for i in range(10):
        A(f"v_and_b32 v{XF+i}, 0xffff0000, v{XF+i}")
    ln(XF, T)
    for k in range(5):
        A(f"ds_write_b64 v6, {vr(XF+2*k,2)} offset:{L_Y2+512*k}")
    A("s_waitcnt lgkmcnt(0)")
    if mlp5:
        for i in range(4):
            A(f"ds_read_b128 {vr(VAL+4*i,4)}, v8 offset:{L_Y2+16*i}")
    else:
        for i in range(5):
            A(f"ds_read_b64 {vr(VAL+2*i,2)}, v8 offset:{L_Y2+8*i}")
    A("s_waitcnt lgkmcnt(0)")
    stamp(1)
    if h1stop == 1:
        A("s_waitcnt vmcnt(0)")
        endp()
    A("s_waitcnt vmcnt(17)")
    stamp(2)
    sel_gemv(N1, VAL, W1, AS, MK, D, D2, T)
    pair_sum([D, D + 1, D + 2, D + 3], [T, T + 1, T + 2, T + 3])
    pack_tags(D, VFF)
    A("v_lshlrev_b32 v8, 5, v5")
    A("v_lshl_add_u32 v8, v4, 4, v8")
    A("s_lshl_b32 s57, s34, 3")
    A("s_add_u32 s57, s57, s35")
    A("s_lshl_b32 s57, s57, 8")
    A(f"s_add_u32 s57, s57, {ZP_OFF}")
    A("s_mov_b32 s60, 0x00ff00ff")
    A("s_mov_b32 s61, 0")
    A("s_mov_b64 exec, s[60:61]")
    A(f"buffer_store_dwordx4 {vr(D,4)}, v8, s[36:39], s57 offen sc1")
    A("s_mov_b64 exec, -1")
    stamp(3)
    if h1stop == 2:
        A("s_waitcnt vmcnt(0)")
        endp()
    A("v_lshlrev_b32 v10, 4, v0")
    A("s_lshl_b32 s58, s34, 11")
    A(f"s_add_u32 s58, s58, {ZP_OFF}")
    if mlp5:
        for r in range(4):
            A(f"v_mov_b32 v{G+4+r}, 0")
    if pubwait & 2:
        A("s_waitcnt vmcnt(0)")
    A("L_H1_POLL:")
    A(f"buffer_load_dwordx4 {vr(G,4)}, v10, s[36:39], s58 offen sc1")
    if mlp5:
        A("s_mov_b64 exec, 0xffff")
    A(f"buffer_load_dwordx4 {vr(G+4,4)}, v10, s[36:39], s58 offen offset:1024 sc1")
    A("s_waitcnt vmcnt(0)")
    if mlp5:
        A("s_mov_b64 exec, -1")
    strip_tags(T, G, True)
    if mlp5:
        A("s_mov_b64 exec, 0xffff")
    strip_tags(T, G + 4, False)
    if mlp5:
        A("s_mov_b64 exec, -1")
    A(f"v_and_b32 v{T}, 0xff, v{T}")
    A(f"v_cmp_ne_u32 vcc, 0, v{T}")
    poll_branch("L_H1_POLL")
    stamp(7)
    if h1stop == 3:
        endp()
    Z = G
    for r in range(4):
        A(f"v_add_f32 v{Z+r}, v{Z+r}, v{G+4+r}")
    swap_add_n([Z + r for r in range(4)], [T + r for r in range(4)], 16)
    swap_add_n([Z + r for r in range(4)], [T + r for r in range(4)], 32)
    c1 = -2.0 * 0.7978845608028654 * LOG2E
    c2 = c1 * 0.044715
    A(f"s_mov_b32 s62, {fl(c2)}")
    for e in range(4):
        z = Z + e
        rbf(z, z)
        if (e & 1) == 0:
            A(f"v_lshlrev_b32 v{T+2}, 16, v{B1+(e>>1)}")
        else:
            A(f"v_and_b32 v{T+2}, 0xffff0000, v{B1+(e>>1)}")
        A(f"v_add_f32 v{z}, v{z}, v{T+2}")
        rbf(z, z)
        A(f"v_mul_f32 v{T+2}, v{z}, v{z}")
        A(f"v_mov_b32 v{T+3}, {fl(c1)}")
        A(f"v_fmac_f32 v{T+3}, s62, v{T+2}")
        A(f"v_mul_f32 v{T+3}, v{T+3}, v{z}")
        A(f"v_exp_f32 v{T+3}, v{T+3}")
        A(f"v_add_f32 v{T+3}, 1.0, v{T+3}")
        A(f"v_rcp_f32 v{T+3}, v{T+3}")
        A(f"v_mul_f32 v{z}, v{z}, v{T+3}")
        A(f"v_cvt_pk_bf16_f32 v{z}, v{z}, v{z}")
    A("v_lshlrev_b32 v6, 4, v5")
    A(f"ds_write_b128 v6, {vr(Z,4)} offset:{L_HH2}")
    A("v_lshlrev_b32 v7, 6, v4")
    A("s_waitcnt lgkmcnt(0)")
    for i in range(4):
        A(f"ds_read_b128 {vr(VAL+4*i,4)}, v7 offset:{L_HH2+16*i}")
    sel_masks(MK, 0, T + 2, T + 3, True)
    A("s_waitcnt lgkmcnt(0)")
    sel_gemv(16, VAL, W2, AS, MK, D, D2, T)
    pack_tags(D, VFF)
    A(f"s_mul_i32 s57, s34, {NC}")
    A("s_add_u32 s57, s57, s35")
    A(f"s_mul_i32 s57, s57, {CB}")
    A(f"s_add_u32 s57, s57, {BP_OFF}")
    A(f"s_mov_b32 s60, {'0xffffffff' if mlp5 else '0x03ff03ff'}")
    A("s_mov_b32 s61, 0")
    A("s_mov_b64 exec, s[60:61]")
    A(f"buffer_store_dwordx4 {vr(D,4)}, v8, s[36:39], s57 offen sc1")
    A("s_mov_b64 exec, -1")
    stamp(4)
    A("L_H1_EXIT:")
    endp()

    C("---- final consumer: 8 output columns ----")
    A("L_FIN:")
    A(f"s_cmp_ge_u32 s2, {NFIN}")
    A("s_cbranch_scc1 L_END")
    if noh or notail:
        A("s_branch L_END")
    XP = 10; B2P = 12; BV = 14
    FA = 20
    FB = 36
    FT = 40
    srd(40, 4, 5, 1280)
    srd(44, 22, 23, 1280)
    srd(48, 24, 25, 1280)
    A("s_lshl_b32 s57, s2, 4")
    A("v_and_b32 v6, 1, v0")
    A("v_lshlrev_b32 v2, 3, v6")
    A(f"buffer_load_dwordx2 {vr(XP,2)}, v2, s[40:43], s57 offen")
    A(f"buffer_load_dwordx2 {vr(B2P,2)}, v2, s[44:47], s57 offen")
    A("v_lshrrev_b32 v7, 1, v0")
    if mlp5:
        A("s_lshr_b32 s58, s2, 4")
        A("s_and_b32 s59, s2, 15")
    else:
        A("s_mul_i32 s58, s2, 6554")
        A("s_lshr_b32 s58, s58, 16")
        A("s_mul_i32 s59, s58, 10")
        A("s_sub_u32 s59, s2, s59")
    A(f"s_mul_i32 s58, s58, {CB}")
    A("s_lshl_b32 s59, s59, 5")
    A("s_add_u32 s58, s58, s59")
    A(f"s_add_u32 s58, s58, {BP_OFF}")
    A(f"v_mul_u32_u24 v3, {NC*CB}, v7")
    A("v_lshl_add_u32 v3, v6, 4, v3")
    A("s_cmp_ge_u32 s2, 40")
    A("s_cselect_b32 s60, 1, 0")
    A("s_mul_i32 s61, s60, 40")
    A("s_sub_u32 s61, s2, s61")
    A("s_lshl_b32 s61, s61, 5")
    A("s_mul_i32 s60, s60, 1280")
    A("s_add_u32 s60, s60, s61")
    A(f"s_add_u32 s60, s60, {AP_OFF}")
    for k in range(1, 4):
        A(f"s_add_u32 s{60+k}, s60, {k*32*2560}")
    A("v_mul_u32_u24 v9, 2560, v7")
    A("v_lshl_add_u32 v9, v6, 4, v9")
    A("s_barrier")
    get_tags()
    for r in range(4):
        A(f"v_mov_b32 v{FB+r}, 0")
    A("s_mov_b32 s64, -1")
    A("s_mov_b32 s65, 0x003fffff")
    stamp(4)
    A("s_barrier")
    stamp(0)

    def lanes_sum(regs, tmps):
        for s_ in (2, 4, 8):
            for v in regs:
                A(f"v_add_f32_dpp v{v}, v{v}, v{v} row_ror:{s_} {DPPM}")
        swap_add_n(regs, tmps, 16)
        swap_add_n(regs, tmps, 32)

    A("s_mov_b64 exec, s[64:65]")
    A("L_FIN_POLLB:")
    A(f"buffer_load_dwordx4 {vr(FB,4)}, v3, s[36:39], s58 offen sc1")
    A("s_waitcnt vmcnt(0)")
    strip_tags(FT, FB, True)
    A(f"v_and_b32 v{FT}, 0xff, v{FT}")
    A(f"v_cmp_ne_u32 vcc, 0, v{FT}")
    poll_branch("L_FIN_POLLB")
    A("s_mov_b64 exec, -1")
    stamp(1)
    for k in range(4):
        A(f"buffer_load_dwordx4 {vr(FA+4*k,4)}, v9, s[36:39], s{60+k} offen sc1")
    lanes_sum([FB + r for r in range(4)], [FT + r for r in range(4)])
    for e in range(4):
        rbf(FB + e, FB + e)
        if (e & 1) == 0:
            A(f"v_lshlrev_b32 v{FT}, 16, v{B2P+(e>>1)}")
        else:
            A(f"v_and_b32 v{FT}, 0xffff0000, v{B2P+(e>>1)}")
        A(f"v_add_f32 v{FB+e}, v{FB+e}, v{FT}")
        rbf(BV + e, FB + e)
    XFP = FB
    for e in range(4):
        if (e & 1) == 0:
            A(f"v_lshlrev_b32 v{XFP+e}, 16, v{XP+(e>>1)}")
        else:
            A(f"v_and_b32 v{XFP+e}, 0xffff0000, v{XP+(e>>1)}")
    A("s_branch L_FIN_CHK")
    A("L_FIN_POLLA:")
    for k in range(4):
        A(f"buffer_load_dwordx4 {vr(FA+4*k,4)}, v9, s[36:39], s{60+k} offen sc1")
    A("L_FIN_CHK:")
    for k in range(4):
        A(f"s_waitcnt vmcnt({3-k})")
        strip_tags(FT, FA + 4 * k, k == 0)
    A(f"v_and_b32 v{FT}, 0xff, v{FT}")
    A(f"v_cmp_ne_u32 vcc, 0, v{FT}")
    poll_branch("L_FIN_POLLA")
    stamp(2)
    for r in range(4):
        A(f"v_add_f32 v{FA+r}, v{FA+r}, v{FA+4+r}")
        A(f"v_add_f32 v{FA+8+r}, v{FA+8+r}, v{FA+12+r}")
    for r in range(4):
        A(f"v_add_f32 v{FA+r}, v{FA+r}, v{FA+8+r}")
    lanes_sum([FA + r for r in range(4)], [FT + r for r in range(4)])
    for e in range(4):
        rbf(FA + e, FA + e)
        A(f"v_add_f32 v{FA+e}, v{FA+e}, v{XFP+e}")
        rbf(FA + e, FA + e)
        A(f"v_add_f32 v{FA+e}, v{FA+e}, v{BV+e}")
    A(f"v_cvt_pk_bf16_f32 v{FA}, v{FA}, v{FA+1}")
    A(f"v_cvt_pk_bf16_f32 v{FA+1}, v{FA+2}, v{FA+3}")
    A("s_mov_b64 exec, 3")
    A(f"buffer_store_dwordx2 {vr(FA,2)}, v2, s[48:51], s57 offen")
    A("s_cmp_lg_u32 s2, 0")
    A("s_cbranch_scc1 L_FIN_DONE")
    A("s_mov_b64 exec, 1")
    A("v_mov_b32 v4, s30")
    A("v_mov_b32 v5, s31")
    A(f"v_mov_b32 v6, {R_OFF}")
    A("buffer_store_dwordx2 v[4:5], v6, s[36:39], 0 offen sc1")
    A("L_FIN_DONE:")
    stamp(5)
    endp()

    C("---- H2 ----")
    A("L_H2:")
    if hprio:
        A(f"s_setprio {hprio}")
    A("s_barrier")
    if noh or h2off:
        endp()
    get_tags()
    wait_flag("L_H2_QW")
    stamp(0)
    WO = 100
    P = 16
    MK2 = 40
    AS2 = 44
    DA = 60
    GO = 80
    VFF2 = 15
    srd(40, 12, 13, 4096 * 1280)
    A("s_lshr_b32 s58, s33, 1")
    A("s_and_b32 s59, s33, 1")
    A("s_lshl_b32 s56, s32, 7")
    A("s_lshl_b32 s57, s58, 5")
    A("s_add_u32 s56, s56, s57")
    A("s_mul_i32 s56, s56, 1280")
    A("s_mul_i32 s57, s59, 640")
    A("s_add_u32 s56, s56, s57")
    A("s_add_u32 s57, s56, 2560")
    A("v_lshrrev_b32 v6, 3, v0")
    A("v_and_b32 v7, 7, v0")
    A("v_mul_u32_u24 v3, 5120, v6")
    A("v_lshl_add_u32 v3, v7, 4, v3")
    for u in range(4):
        for v in range(5):
            so = "s56" if u < 2 else "s57"
            A(f"buffer_load_dwordx4 {vr(WO+4*(u*5+v),4)}, v3, s[40:43], {so} offen offset:{(u&1)*1280+128*v}{wp}")
    sel_masks(MK2, 0, 8, 9, False)
    A(f"v_mov_b32 v{VFF2}, 0xff")
    A("v_and_b32 v2, 31, v0")
    A("v_lshlrev_b32 v2, 4, v2")
    A("v_mov_b32 v10, 0")
    A("s_lshl_b32 s60, s2, 9")
    A(f"s_add_u32 s60, s60, {OP_OFF}")
    A("s_lshl_b32 s61, s32, 7")
    A(f"s_add_u32 s61, s61, {ML_OFF}")
    A("s_lshl_b32 s62, s33, 4")
    A("s_add_u32 s62, s62, s61")
    A("s_lshl_b32 s63, s32, 12")
    A("s_lshl_b32 s64, s58, 7")
    A("s_add_u32 s63, s63, s64")
    A(f"s_add_u32 s63, s63, {OP_OFF}")
    A("v_lshlrev_b32 v11, 9, v7")
    A("v_lshl_add_u32 v11, v6, 4, v11")
    A("v_lshlrev_b32 v12, 4, v7")
    A("v_lshrrev_b32 v8, 3, v5")
    A("v_lshrrev_b32 v9, 1, v4")
    A("v_lshl_add_u32 v8, v8, 1, v9")
    A("v_and_b32 v9, 7, v5")
    A("v_lshlrev_b32 v13, 5, v9")
    A("v_and_b32 v9, 1, v4")
    A("v_lshl_add_u32 v13, v9, 4, v13")
    A("v_lshl_add_u32 v13, v8, 8, v13")
    A("v_lshlrev_b32 v14, 5, v5")
    A("v_lshl_add_u32 v14, v4, 4, v14")
    A("s_mul_i32 s64, s2, 1280")
    A(f"s_add_u32 s64, s64, {AP_OFF}")
    A("s_mov_b32 s66, 0x00ff00ff")
    A("s_mov_b32 s67, 0")
    A("s_waitcnt vmcnt(0)")
    stamp(4)
    if notail:
        endp()
    A("s_barrier")
    stamp(5)
    for w in range(4):
        A(f"ds_read_b64 {vr(P+16+2*w,2)}, v10 offset:{L_PART+576*w+512}")
    for w in range(4):
        A(f"ds_read_b128 {vr(P+4*w,4)}, v2 offset:{L_PART+576*w}")
    M = 2 + 4
    A("s_waitcnt lgkmcnt(4)")
    A(f"v_max3_f32 v8, v{P+16}, v{P+18}, v{P+20}")
    A(f"v_max_f32 v8, v8, v{P+22}")
    for w in range(4):
        A(f"v_sub_f32 v{P+16+2*w}, v{P+16+2*w}, v8")
    for w in range(4):
        A(f"v_mul_f32 v{P+16+2*w}, {fl(LOG2E)}, v{P+16+2*w}")
    for w in range(4):
        A(f"v_exp_f32 v{P+16+2*w}, v{P+16+2*w}")
    A(f"v_mov_b32 v{GO+4}, v8")
    A(f"v_mov_b32 v{GO+5}, s30")
    A(f"v_mov_b32 v{GO+7}, s31")
    A(f"v_mul_f32 v{GO+6}, v{P+16}, v{P+17}")
    for w in range(1, 4):
        A(f"v_fmac_f32 v{GO+6}, v{P+16+2*w}, v{P+17+2*w}")
    A("s_waitcnt lgkmcnt(0)")
    for r in range(4):
        A(f"v_mul_f32 v{GO+r}, v{P+16}, v{P+r}")
    for w in range(1, 4):
        for r in range(4):
            A(f"v_fmac_f32 v{GO+r}, v{P+16+2*w}, v{P+4*w+r}")
    pack_tags(GO, VFF2)
    A("s_mov_b32 exec_hi, 0")
    A(f"buffer_store_dwordx4 {vr(GO,4)}, v2, s[36:39], s60 offen sc1")
    A("s_mov_b64 exec, 1")
    A(f"buffer_store_dwordx4 {vr(GO+4,4)}, v10, s[36:39], s62 offen sc1")
    A("s_mov_b64 exec, -1")
    stamp(6)
    GI = P
    A("L_H2_POLL:")
    A(f"buffer_load_dwordx4 {vr(GI+4,4)}, v12, s[36:39], s61 offen sc1")
    A(f"buffer_load_dwordx4 {vr(GI,4)}, v11, s[36:39], s63 offen sc1")
    A("s_waitcnt vmcnt(0)")
    strip_tags(8, GI, True)
    A("v_and_b32 v8, 0xff, v8")
    tagcheck(8, GI + 4, False)
    A("v_cmp_ne_u32 vcc, 0, v8")
    poll_branch("L_H2_POLL")
    stamp(7)
    mm, ll = GI + 4, GI + 6
    A(f"v_mov_b32 v8, v{mm}")
    oct_reduce([8], "v_max_f32")
    A(f"v_sub_f32 v8, v{mm}, v8")
    A(f"v_mul_f32 v8, {fl(LOG2E)}, v8")
    A("v_exp_f32 v8, v8")
    A(f"v_mul_f32 v9, v8, v{ll}")
    for r in range(4):
        A(f"v_mul_f32 v{GI+r}, v8, v{GI+r}")
    oct_reduce([9, GI, GI + 1, GI + 2, GI + 3])
    A("v_rcp_f32 v9, v9")
    for r in range(4):
        A(f"v_mul_f32 v{GI+r}, v{GI+r}, v9")
    for r in range(4):
        A(f"v_cvt_pk_bf16_f32 v{GI+r}, v{GI+r}, v{GI+r}")
    for u in range(4):
        for r in range(4):
            A(f"v_and_b32 v{AS2+4*u+r}, v{GI+u}, v{MK2+r}")
    for u in range(4):
        for v in range(5):
            c = "0" if u == 0 else vr(DA + 4 * v, 4)
            A(f"v_mfma_f32_16x16x32_bf16 {vr(DA+4*v,4)}, {vr(AS2+4*u,4)}, {vr(WO+4*(u*5+v),4)}, {c}")
    for a in (0, 2):
        for r in range(4):
            A(f"v_permlane32_swap_b32 v{DA+4*a+r}, v{DA+4*(a+1)+r}")
    for a in (0, 2):
        for r in range(4):
            A(f"v_add_f32_dpp v{DA+4*a+r}, v{DA+4*(a+1)+r}, v{DA+4*a+r} row_ror:8 {DPPM}")
    for r in range(4):
        A(f"v_mov_b32_dpp v{DA+r}, v{DA+8+r} row_ror:8 row_mask:0xf bank_mask:0xc")
    pack_tags(DA, VFF2)
    A(f"buffer_store_dwordx4 {vr(DA,4)}, v13, s[36:39], s64 offen sc1")
    pair_sum([DA + 16 + r for r in range(4)], [DA + 4 + r for r in range(4)])
    pack_tags(DA + 16, VFF2)
    A("s_mov_b64 exec, s[66:67]")
    A(f"buffer_store_dwordx4 {vr(DA+16,4)}, v14, s[36:39], s64 offen offset:1024 sc1")
    stamp(3)
    endp()

    C("---- streamers ----")
    A("L_STREAM:")
    stamp(5)
    if sprio:
        A(f"s_setprio {sprio}")
    RB = 64
    NS = NP
    AQ = 8
    MKS = 24
    DSC = 28
    DO = 32
    PA = 36
    vS, vT, vP, vP2s, vP2, vL, vM, vT2 = 44, 45, 46, 47, 48, 49, 50, 51
    vK, vV = 2, 3
    vTK, vZ, vOne = 56, 57, 58
    assert RB + 32 * NS <= 256
    A("s_lshl_b32 s56, s32, 22")
    A("s_add_u32 s40, s6, s56")
    A("s_addc_u32 s41, s7, 0")
    A(f"s_mov_b32 s42, {4<<20}")
    A("s_mov_b32 s43, 0x20000")
    A("s_add_u32 s44, s8, s56")
    A("s_addc_u32 s45, s9, 0")
    A(f"s_mov_b32 s46, {4<<20}")
    A("s_mov_b32 s47, 0x20000")
    A(f"v_lshlrev_b32 v{vK}, 8, v5")
    A(f"v_lshl_add_u32 v{vK}, v4, 4, v{vK}")
    A(f"v_lshlrev_b32 v{vV}, 4, v0")
    A(f"s_mul_i32 s72, s33, {(128 if (pmap or pfake) else NLOC)*4096}")
    A("s_sub_u32 s57, s3, 4")
    A("s_lshl_b32 s57, s57, 12")
    A("s_add_u32 s56, s72, s57")
    SOFF = 60

    def req_ticket():
        A("s_mov_b64 exec, 1")
        A(f"ds_add_rtn_u32 v{vTK}, v{vZ}, v{vOne} offset:{L_FLAG+8}")
        A("s_mov_b64 exec, -1")

    def slot_regs(slot):
        return RB + 32 * slot

    def loads(slot):
        b = slot_regs(slot)
        for kk in range(4):
            A(f"buffer_load_dwordx4 {vr(b+4*kk,4)}, v{vK}, s[40:43], s{SOFF+slot} offen offset:{64*kk}{kp}")
        for u in range(4):
            A(f"buffer_load_dwordx4 {vr(b+16+4*u,4)}, v{vV}, s[44:47], s{SOFF+slot} offen offset:{1024*u}{kp}")

    iu = [0]

    def issue_static(slot):
        A(f"s_mov_b32 s{SOFF+slot}, s56")
        A("s_add_u32 s56, s56, 16384")
        loads(slot)

    def issue(slot):
        A("s_waitcnt lgkmcnt(0)")
        A(f"v_readfirstlane_b32 s58, v{vTK}")
        A("s_lshl_b32 s59, s58, 12")
        A("s_add_u32 s59, s59, s72")
        A(f"s_cmp_lt_u32 s58, {NLOC}")
        if pool:
            iu[0] += 1
            u = iu[0]
            A(f"s_cbranch_scc1 L_TK_{u}")
            A("s_lshl_b32 s58, s58, 2")
            A(f"v_mov_b32 v{vT}, s58")
            A("s_mov_b32 s82, 0")
            A(f"L_TB_{u}:")
            A(f"ds_read_b32 v{vT2}, v{vT} offset:{L_TAB-4*NLOC}")
            A("s_waitcnt lgkmcnt(0)")
            A(f"v_readfirstlane_b32 s59, v{vT2}")
            A("s_cmp_lg_u32 s59, -1")
            A(f"s_cbranch_scc1 L_TK_{u}")
            if diag:
                A("s_add_u32 s79, s79, 1")
            A("s_add_u32 s82, s82, 1")
            A(f"s_cmp_lt_u32 s82, {POLL_MAX*16}")
            A(f"s_cbranch_scc1 L_TB_{u}")
            A(f"L_TK_{u}:")
            A(f"s_mov_b32 s{SOFF+slot}, s59")
        else:
            A(f"s_cselect_b32 s{SOFF+slot}, s59, {OOB}")
        loads(slot)
        req_ticket()

    if diag >= 2:
        A("v_mov_b32 v63, 0")
        A("s_mov_b32 m0, 0")
        A("s_mov_b32 s76, 0")
    for k in range(min(b0early, DS)):
        issue_static(k)
    stamp(7)
    A("s_barrier")
    stamp(0)
    for k in range(min(b0early, DS), min(DS, NP)):
        issue_static(k)
    A(f"v_mov_b32 v{vZ}, 0")
    A(f"v_mov_b32 v{vOne}, 1")
    sel_masks(MKS, 0, vT, vT2, True)
    A(f"v_mov_b32 v{vM}, 0xff800000")
    A(f"v_mov_b32 v{vL}, 0")
    for r in range(4):
        A(f"v_mov_b32 v{DO+r}, 0")
    A("v_lshlrev_b32 v6, 4, v4")
    A("s_mov_b32 s81, 0")
    if diag:
        A("s_mov_b32 s79, 0")
    for k in range(DS, NP):
        A("s_cmp_lg_u32 s81, 0")
        A(f"s_cbranch_scc1 L_FILL_{k}")
        A(f"s_waitcnt vmcnt({PER*(DS-1)})")
        read_flag(vT, 81)
        A(f"L_FILL_{k}:")
        issue_static(k)
    stamp(1)
    wait_flag("L_S_QW", vT, 81)
    for kk in range(4):
        A(f"ds_read_b128 {vr(AQ+4*kk,4)}, v6 offset:{L_Q+64*kk}")
    A("s_waitcnt lgkmcnt(0)")
    req_ticket()
    stamp(2)

    uid = [0]

    def step(slot, wait, issue_slot):
        uid[0] += 1
        u = uid[0]
        b = slot_regs(slot)
        A(f"s_cmp_ge_u32 s{SOFF+slot}, {OOB}")
        A("s_cbranch_scc1 L_SDONE")
        A(f"s_waitcnt vmcnt({wait})")
        if diag >= 2:
            A("s_waitcnt lgkmcnt(0)")
            A("v_writelane_b32 v63, s76, m0")
            A("s_memrealtime s[76:77]")
            A("s_add_u32 m0, m0, 1")
        if issue_slot is not None:
            issue(issue_slot)
        for kk in range(4):
            c = "0" if kk == 0 else vr(DSC, 4)
            A(f"v_mfma_f32_16x16x32_bf16 {vr(DSC,4)}, {vr(AQ+4*kk,4)}, {vr(b+4*kk,4)}, {c}")
        rbf(vT, DSC)
        A(f"v_mul_f32 v{vT}, {fl(SCALE)}, v{vT}")
        rbf(vS, vT)
        A(f"v_cmp_gt_f32 vcc, v{vS}, v{vM}")
        A(f"s_cbranch_vccz L_NORESC_{u}")
        A(f"v_max_f32_dpp v{vT}, v{vS}, v{vS} row_ror:8 {DPPM}")
        for s in (4, 2, 1):
            A(f"v_max_f32_dpp v{vT}, v{vT}, v{vT} row_ror:{s} {DPPM}")
        A(f"v_max_f32 v{vT}, v{vT}, v{vM}")
        A(f"v_sub_f32 v{vT2}, v{vM}, v{vT}")
        A(f"v_mul_f32 v{vT2}, {fl(LOG2E)}, v{vT2}")
        A(f"v_exp_f32 v{vT2}, v{vT2}")
        A(f"v_mov_b32 v{vM}, v{vT}")
        A(f"v_mul_f32 v{vL}, v{vL}, v{vT2}")
        for r in range(4):
            A(f"v_mul_f32 v{DO+r}, v{DO+r}, v{vT2}")
        A(f"L_NORESC_{u}:")
        A(f"v_sub_f32 v{vT}, v{vS}, v{vM}")
        A(f"v_mul_f32 v{vT}, {fl(LOG2E)}, v{vT}")
        A(f"v_exp_f32 v{vP}, v{vT}")
        A(f"v_cvt_pk_bf16_f32 v{vP2s}, v{vP}, v{vP}")
        A(f"v_cvt_pk_bf16_f32 v{vP2}, v{vP}, v{vP}")
        A(f"v_add_f32 v{vL}, v{vL}, v{vP}")
        A(f"v_mov_b32_dpp v{vP2}, v{vP2s} row_shl:1 row_mask:0x2 bank_mask:0xf")
        A(f"v_mov_b32_dpp v{vP2}, v{vP2s} row_shl:2 row_mask:0x4 bank_mask:0xf")
        A(f"v_mov_b32_dpp v{vP2}, v{vP2s} row_shl:3 row_mask:0x8 bank_mask:0xf")

        def ands(uu):
            a = PA + 4 * (uu & 1)
            for r in range(4):
                A(f"v_and_b32_dpp v{a+r}, v{vP2}, v{MKS+r} row_newbcast:{4*uu} {DPPM}")

        def pv(uu):
            a = PA + 4 * (uu & 1)
            A(f"v_mfma_f32_16x16x32_bf16 {vr(DO,4)}, {vr(a,4)}, {vr(b+16+4*uu,4)}, {vr(DO,4)}")
        ands(0); ands(1); pv(0); ands(2); pv(1); ands(3); pv(2); pv(3)

    RS = DIST + 1
    assert RS <= NP
    first = NP - RS
    for n in range(first):
        step(n, PER * (NP - 1 - n), None)
    step(first, PER * (RS - 1), None)
    A("L_SLOOP:")
    for i in range(RS):
        cons = first + (i + 1) % RS
        free = first + i % RS
        step(cons, PER * (DIST - 1), free)
    A("s_branch L_SLOOP")

    A("L_SDONE:")
    stamp(3)
    if diag and pool:
        A("s_lshl_b32 s58, s2, 2")
        A("s_add_u32 s58, s58, s3")
        A("s_lshl_b32 s58, s58, 2")
        A("s_add_u32 s58, s58, 1008")
        A("v_mov_b32 v60, s58")
        A("v_mov_b32 v61, s79")
        A("s_mov_b64 exec, 1")
        A("global_store_dword v60, v61, s[26:27]")
        A("s_mov_b64 exec, -1")
    if diag >= 2:
        A("s_waitcnt vmcnt(0) lgkmcnt(0)")
        A("v_writelane_b32 v63, s76, m0")
        A("s_lshl_b32 s58, s2, 2")
        A("s_add_u32 s58, s58, s3")
        A("s_sub_u32 s58, s58, 4")
        A("s_lshl_b32 s58, s58, 8")
        A(f"s_add_u32 s58, s58, {TS2_OFF}")
        A("v_lshlrev_b32 v62, 2, v0")
        A("buffer_store_dword v63, v62, s[36:39], s58 offen")
    row_sum(vL)
    A("v_lshlrev_b32 v6, 5, v5")
    A("v_lshl_add_u32 v6, v4, 4, v6")
    A("s_sub_u32 s58, s3, 4")
    A("s_mul_i32 s58, s58, 576")
    A("v_add_u32 v6, s58, v6")
    A("v_mov_b32 v7, s58")
    A(f"v_mov_b32 v52, v{vM}")
    A(f"v_mov_b32 v53, v{vL}")
    A("s_mov_b32 exec_hi, 0")
    A(f"ds_write_b128 v6, {vr(DO,4)} offset:{L_PART}")
    A("s_mov_b64 exec, 1")
    A(f"ds_write_b64 v7, v[52:53] offset:{L_PART+512}")
    A("s_mov_b64 exec, -1")
    A("s_waitcnt lgkmcnt(0)")
    A("s_barrier")
    stamp(4)
    flush_stamps()
    A("L_END:")
    A("s_endpgm")

    L = [x for x in L if x is not None]
    out, nins = hz.fix(L)
    out.append('.section .rodata,"a"')
    out.append(".p2align 6")
    out.append(f".amdhsa_kernel {NAME}")
    out.append("  .amdhsa_next_free_vgpr 256")
    out.append("  .amdhsa_next_free_sgpr 102")
    out.append("  .amdhsa_accum_offset 256")
    out.append("  .amdhsa_group_segment_fixed_size 0")
    out.append("  .amdhsa_kernarg_size 104")
    out.append("  .amdhsa_user_sgpr_count 2")
    out.append("  .amdhsa_user_sgpr_kernarg_segment_ptr 1")
    out.append("  .amdhsa_system_sgpr_workgroup_id_x 1")
    out.append(".end_amdhsa_kernel")
    return "\n".join(out) + "\n"


def parse_spec(spec):
    kw = {}
    if spec:
        for it in spec.split(","):
            k, v = it.split("=")
            try:
                v = int(v)
            except ValueError:
                v = v.replace("+", " ")
            kw[k] = v
    return kw


if __name__ == "__main__":
    spec = sys.argv[1] if len(sys.argv) > 1 else ""
    sys.stdout.write(gen(**parse_spec(spec)))
```

```python
import sys, struct, os
sys.path.insert(0, os.path.dirname(os.path.abspath(__file__)))
import hz

NAME = "parallel_sum__gqa_block_cached__mixer_channel_mlp__decode_kernel"

WS_SIZE = 0x400000
R_OFF = 0x0
QP_OFF = 0x10000
ZP_OFF = 0x30000
OP_OFF = 0x40000
ML_OFF = 0x60000
AP_OFF = 0x70000
BP_OFF = 0xC0000
CNT_OFF = 0x110000
TS_OFF = 0x180000
TS2_OFF = 0x200000
TAG0 = 0x5BD1E995
TAG1 = 0x2545F491

L_XN2 = 0
L_Y2 = 2560
L_Q = 5120
L_PART = 5376
L_HH2 = 7680
L_FLAG = 7936
L_TAB = 8192

OOB = 0x40000000
POLL_MAX = 200000
NFIN = 80


def f2u(x):
    return struct.unpack("<I", struct.pack("<f", x))[0]


def fl(x):
    return "0x%08x" % f2u(x)


LOG2E = 1.4426950408889634
SCALE = 128 ** -0.5


def gen(NP=6, DIST=2, DS=2, kpol="nt", wpol="nt", diag=0, header=True, b0early=0, pubwait=3,
        noq=0, noh=0, h1off=0, h2off=0, notail=0, sprio=0, hprio=0, qprio=0,
        pool=0, NLOC=112, CH=2, KQ=3, LOOK=7, zmap2=0, mprio=0, pmap=0, pfake=0, satom=0, h1stop=9, now1=0, now2=0, mlp5=0, w2pol=None, cst=256, n1=0, xge=0,
        b3=0, fdense=0, fthr=32, hdense=0, wolate=0):
    L = []
    A = L.append

    def C(s):
        L.append("; " + s)

    if not pool:
        NLOC = 128
    POOL = 8 * (128 - NLOC)
    assert LOOK >= KQ * CH or not pool or satom
    PER = 8
    kp = (" " + kpol) if kpol else ""
    wp = (" " + wpol) if wpol else ""
    w2p = wp if w2pol is None else ((" " + w2pol) if w2pol != "def" else "")
    NC = 5 if mlp5 else 8
    R1 = 640 // NC
    ZST = 2048
    CB = 512 if mlp5 else 384

    def srd(base, lo, hi, size):
        A(f"s_mov_b32 s{base}, s{lo}")
        A(f"s_mov_b32 s{base+1}, s{hi}")
        A(f"s_mov_b32 s{base+2}, {size}")
        A(f"s_mov_b32 s{base+3}, 0x20000")

    def vr(a, n):
        return f"v[{a}:{a+n-1}]"

    DPPM = "row_mask:0xf bank_mask:0xf"

    def rbf(dst, src):
        A(f"v_cvt_pk_bf16_f32 v{dst}, v{src}, v{src}")
        A(f"v_and_b32 v{dst}, 0xffff0000, v{dst}")

    def row_sum(v, steps=(8, 4, 2, 1), op="v_add_f32"):
        for s in steps:
            A(f"{op}_dpp v{v}, v{v}, v{v} row_ror:{s} {DPPM}")

    def oct_reduce(regs, op="v_add_f32"):
        for mod in ("quad_perm:[1,0,3,2]", "quad_perm:[2,3,0,1]", "row_half_mirror"):
            for v in regs:
                A(f"{op}_dpp v{v}, v{v}, v{v} {mod} {DPPM}")

    def swap_add(v, t, which, op="v_add_f32"):
        A(f"v_mov_b32 v{t}, v{v}")
        A(f"v_permlane{which}_swap_b32 v{v}, v{t}")
        A(f"{op} v{v}, v{v}, v{t}")

    def swap_add_n(regs, tmps, which):
        for v, t in zip(regs, tmps):
            A(f"v_mov_b32 v{t}, v{v}")
        for v, t in zip(regs, tmps):
            A(f"v_permlane{which}_swap_b32 v{v}, v{t}")
        for v, t in zip(regs, tmps):
            A(f"v_add_f32 v{v}, v{v}, v{t}")

    def pair_sum(regs, tmps):
        for v, t in zip(regs, tmps):
            A(f"v_mov_b32 v{t}, v{v}")
        for v, t in zip(regs, tmps):
            A(f"v_permlane32_swap_b32 v{v}, v{t}")
        for v, t in zip(regs, tmps):
            A(f"v_add_f32_dpp v{v}, v{t}, v{v} row_ror:8 {DPPM}")

    def wave_sum(v, t):
        row_sum(v)
        swap_add(v, t, 16)
        swap_add(v, t, 32)

    def stamp(slot):
        if diag:
            A(f"s_memrealtime s[{84+2*slot}:{85+2*slot}]")

    def flush_stamps(sv=248):
        if not diag:
            return
        A("s_mov_b64 exec, -1")
        A("s_waitcnt vmcnt(0) lgkmcnt(0)")
        A(f"s_lshl_b32 s82, s2, 9")
        A(f"s_lshl_b32 s83, s3, 6")
        A("s_add_u32 s82, s82, s83")
        A(f"s_add_u32 s82, s82, {TS_OFF}")
        A(f"v_mov_b32 v{sv+4}, 0")
        A("s_mov_b64 exec, 1")
        for k in range(4):
            for r in range(4):
                A(f"v_mov_b32 v{sv+r}, s{84+4*k+r}")
            A(f"buffer_store_dwordx4 v[{sv}:{sv+3}], v{sv+4}, s[36:39], s82 offen offset:{16*k}")
            A("s_nop 1")
        A("s_mov_b64 exec, -1")

    def endp():
        flush_stamps()
        A("s_endpgm")

    def ln(xin, tmp):
        t0, t1, t2, t3, t4, t5 = [tmp + i for i in range(6)]
        A(f"v_add_f32 v{t0}, v{xin}, v{xin+1}")
        for i in range(2, 10):
            A(f"v_add_f32 v{t0}, v{t0}, v{xin+i}")
        wave_sum(t0, t1)
        A(f"v_mul_f32 v{t0}, {fl(1.0/640.0)}, v{t0}")
        A(f"v_sub_f32 v{t2}, v{xin}, v{t0}")
        A(f"v_mul_f32 v{t3}, v{t2}, v{t2}")
        for i in range(1, 10):
            A(f"v_sub_f32 v{t2}, v{xin+i}, v{t0}")
            A(f"v_fmac_f32 v{t3}, v{t2}, v{t2}")
        wave_sum(t3, t1)
        A(f"v_mul_f32 v{t3}, {fl(1.0/640.0)}, v{t3}")
        rbf(t3, t3)
        A(f"v_add_f32 v{t3}, {fl(1e-5)}, v{t3}")
        rbf(t3, t3)
        A(f"v_sqrt_f32 v{t3}, v{t3}")
        rbf(t0, t0)
        rbf(t3, t3)
        A(f"v_rcp_f32 v{t3}, v{t3}")
        for i in range(0, 10, 2):
            A(f"v_sub_f32 v{t1}, v{xin+i}, v{t0}")
            A(f"v_sub_f32 v{t2}, v{xin+i+1}, v{t0}")
            A(f"v_cvt_pk_bf16_f32 v{t4}, v{t1}, v{t2}")
            A(f"v_lshlrev_b32 v{t1}, 16, v{t4}")
            A(f"v_and_b32 v{t2}, 0xffff0000, v{t4}")
            A(f"v_mul_f32 v{t1}, v{t1}, v{t3}")
            A(f"v_mul_f32 v{t2}, v{t2}, v{t3}")
            A(f"v_cvt_pk_bf16_f32 v{xin+i}, v{t1}, v{t1}")
            A(f"v_cvt_pk_bf16_f32 v{xin+i+1}, v{t2}, v{t2}")

    def unpack_pairs(src, dst, n):
        for k in range(n):
            A(f"v_lshlrev_b32 v{dst+2*k}, 16, v{src+k}")
            A(f"v_and_b32 v{dst+2*k+1}, 0xffff0000, v{src+k}")

    def sel_masks(m, lane, t0, t1, eight_rows):
        A(f"v_and_b32 v{t0}, 1, v{lane}")
        A(f"v_cmp_eq_u32 vcc, 1, v{t0}")
        A(f"v_mov_b32 v{t0}, 0x0000ffff")
        A(f"v_mov_b32 v{t1}, 0xffff0000")
        A(f"v_cndmask_b32 v{t0}, v{t0}, v{t1}, vcc")
        A(f"v_and_b32 v{t1}, {15 if eight_rows else 7}, v{lane}")
        A(f"v_lshrrev_b32 v{t1}, 1, v{t1}")
        for r in range(4):
            A(f"v_cmp_eq_u32 vcc, {r}, v{t1}")
            A(f"v_cndmask_b32 v{m+r}, 0, v{t0}, vcc")

    def sel_gemv(n, vals, W, aset, masks, D, D2, tmp, waits=None):
        for t in range(n):
            if waits and t in waits:
                A(f"s_waitcnt vmcnt({waits[t]})")
            a = aset + 4 * (t & 1)
            d = D if (t & 1) == 0 else D2
            for r in range(4):
                A(f"v_and_b32 v{a+r}, v{vals+t}, v{masks+r}")
            c = "0" if t < 2 else vr(d, 4)
            A(f"v_mfma_f32_16x16x32_bf16 {vr(d,4)}, {vr(a,4)}, {vr(W+4*t,4)}, {c}")
        for r in range(4):
            A(f"v_add_f32 v{D+r}, v{D+r}, v{D2+r}")

    def tagcheck(acc, g, first):
        if first:
            A(f"v_xor_b32 v{acc}, s30, v{g+1}")
        else:
            A(f"v_bitop3_b32 v{acc}, v{acc}, v{g+1}, s30 bitop3:0xf6")
        A(f"v_bitop3_b32 v{acc}, v{acc}, v{g+3}, s31 bitop3:0xf6")

    def pack_tags(g, vff):
        for r in range(4):
            A(f"v_bfi_b32 v{g+r}, v{vff}, s{72+r}, v{g+r}")

    def strip_tags(acc, g, first):
        for r in range(4):
            A(f"v_xor_b32 v{g+r}, s{72+r}, v{g+r}")
        if first:
            A(f"v_or3_b32 v{acc}, v{g}, v{g+1}, v{g+2}")
            A(f"v_or_b32 v{acc}, v{acc}, v{g+3}")
        else:
            A(f"v_or3_b32 v{acc}, v{acc}, v{g}, v{g+1}")
            A(f"v_or3_b32 v{acc}, v{acc}, v{g+2}, v{g+3}")

    def poll_branch(label):
        A(f"s_cbranch_vccz {label}_OK")
        A("s_add_u32 s80, s80, 1")
        A(f"s_cmp_lt_u32 s80, {POLL_MAX}")
        A(f"s_cbranch_scc1 {label}")
        A(f"{label}_OK:")

    def read_flag(vt, sdst, off=0):
        A(f"v_mov_b32 v{vt}, 0")
        A(f"ds_read_b32 v{vt}, v{vt} offset:{L_FLAG+off}")
        A("s_waitcnt lgkmcnt(0)")
        A(f"v_readfirstlane_b32 s{sdst}, v{vt}")

    def wait_flag(label, vt=2, sdst=81, off=0):
        A("s_mov_b32 s82, 0")
        A(f"{label}:")
        read_flag(vt, sdst, off)
        A(f"s_cmp_lg_u32 s{sdst}, 0")
        A(f"s_cbranch_scc1 {label}_OK")
        A("s_add_u32 s82, s82, 1")
        A(f"s_cmp_lt_u32 s82, {POLL_MAX*16}")
        A(f"s_cbranch_scc1 {label}")
        A(f"{label}_OK:")

    def get_tags(compact=True):
        A("s_waitcnt lgkmcnt(0)")
        A(f"s_add_u32 s30, s30, {TAG0}")
        A(f"s_add_u32 s31, s31, {TAG1}")
        if compact:
            A("s_and_b32 s72, s30, 0xff")
            A("s_bfe_u32 s73, s30, 0x80008")
            A("s_bfe_u32 s74, s30, 0x80010")
            A("s_lshr_b32 s75, s30, 24")

    if header:
        hdr = open("parallel_sum__gqa_block_cached__mixer_channel_mlp__decode.s.ref").read().split("\n")
        for ln_ in hdr:
            if ln_.startswith("; @launch") or ln_.startswith(".amdgcn_target"):
                break
            if ln_.startswith("; Override") or ln_.startswith("; grid="):
                continue
            L.append(ln_)
    LDS_SIZE = 10240 if pool else 8192
    L.append(f"; @launch grid=(256,1,1) block=(512,1,1) lds={LDS_SIZE}")
    L.append('.amdgcn_target "amdgcn-amd-amdhsa--gfx950"')
    L.append(".text")
    L.append(f".globl {NAME}")
    L.append(".p2align 8")
    L.append(f".type {NAME},@function")
    L.append(f"{NAME}:")

    C("256 workgroups x 8 waves. waves 0..3 helpers, waves 4..7 stream K/V")
    if diag:
        A("s_memrealtime s[96:97]")
        for r in list(range(84, 96)) + [98, 99]:
            A(f"s_mov_b32 s{r}, 0x5a5a5a5a")
    A("s_cmp_ge_u32 s2, 256")
    A("s_cbranch_scc1 L_END")
    A("s_load_dwordx16 s[4:19], s[0:1], 0")
    A("s_load_dwordx8 s[20:27], s[0:1], 64")
    A("s_load_dwordx2 s[28:29], s[0:1], 96")
    A("v_lshrrev_b32 v1, 6, v0")
    A("v_and_b32 v0, 63, v0")
    A("v_readfirstlane_b32 s3, v1")
    A("s_lshr_b32 s32, s2, 3")
    A("s_and_b32 s33, s2, 7")
    A("v_lshrrev_b32 v4, 4, v0")
    A("v_and_b32 v5, 15, v0")
    A("s_waitcnt lgkmcnt(0)")
    srd(36, 28, 29, WS_SIZE)
    A("s_cmp_ge_u32 s3, 4")
    A("s_cbranch_scc1 L_STREAM")
    A(f"s_load_dwordx2 s[30:31], s[28:29], {R_OFF}")
    A("s_mov_b32 s80, 0")
    A("s_cmp_eq_u32 s3, 1")
    A("s_cbranch_scc1 L_H1")
    A("s_cmp_eq_u32 s3, 2")
    A("s_cbranch_scc1 L_H2")
    A("s_cmp_eq_u32 s3, 3")
    A("s_cbranch_scc1 L_FIN")

    C("---- H0 ----")
    stamp(4)
    X = 10
    XF = 16
    T = 26
    MK = 32
    AS = 36
    D = 44
    D2 = 48
    VAL = 52
    G = 72
    W = 100
    srd(40, 4, 5, 1280)
    srd(44, 10, 11, 640 * 8192)
    A("v_lshlrev_b32 v2, 2, v0")
    for k in range(5):
        A(f"buffer_load_dword v{X+k}, v2, s[40:43], 0 offen offset:{256*k}")
    A("v_lshrrev_b32 v6, 3, v0")
    A("v_and_b32 v7, 7, v0")
    A(f"v_mul_u32_u24 v3, {20*8192}, v6")
    A("v_lshl_add_u32 v3, v7, 4, v3")
    if noq:
        A("s_barrier")
        A("v_mov_b32 v7, 0")
        A("v_mov_b32 v8, 1")
        A(f"ds_write_b32 v7, v8 offset:{L_FLAG}")
        endp()
    if qprio:
        A(f"s_setprio {qprio}")
    A("s_lshr_b32 s58, s33, 1")
    A("s_and_b32 s59, s33, 1")
    A(f"s_mul_i32 s56, s58, {160*8192}")
    A("s_lshl_b32 s57, s32, 8")
    A("s_add_u32 s56, s56, s57")
    A("s_lshl_b32 s57, s59, 7")
    A("s_add_u32 s56, s56, s57")
    for t in range(20):
        A(f"buffer_load_dwordx4 {vr(W+4*t,4)}, v3, s[44:47], s56 offen{wp}")
        if t < 19:
            A("s_add_u32 s56, s56, 8192")
    XW = 0
    if pool:
        XW = 1
        A(f"s_mul_i32 s70, s32, {cst}")
        A(f"s_add_u32 s70, s70, {CNT_OFF}")
        A("s_cmp_eq_u32 s33, 0")
        A(f"s_cselect_b32 s57, s70, {OOB}")
        A("v_mov_b32 v8, 0")
        A("s_mov_b64 exec, 1")
        A("buffer_store_dword v8, v8, s[36:39], s57 offen sc1")
        A("s_mov_b64 exec, -1")
    stamp(5)
    A("s_barrier")
    stamp(0)
    sel_masks(MK, 0, T, T + 1, False)
    A("v_mul_u32_u24 v7, 80, v6")
    A("v_lshlrev_b32 v6, 3, v0")
    A(f"s_mul_i32 s57, s58, 640")
    A("v_add_u32 v7, s57, v7")
    A(f"s_waitcnt vmcnt({20+XW})")
    unpack_pairs(X, XF, 5)
    ln(XF, T)
    for k in range(5):
        A(f"ds_write_b64 v6, {vr(XF+2*k,2)} offset:{L_XN2+512*k}")
    A("s_waitcnt lgkmcnt(0)")
    for i in range(5):
        A(f"ds_read_b128 {vr(VAL+4*i,4)}, v7 offset:{L_XN2+16*i}")
    get_tags(False)
    stamp(1)
    sel_gemv(20, VAL, W, AS, MK, D, D2, T, waits={0: 15+XW, 5: 10+XW, 10: 5+XW, 15: XW})
    pair_sum([D, D + 1, D + 2, D + 3], [T, T + 1, T + 2, T + 3])
    A(f"v_mov_b32_dpp v{D}, v{D+2} row_ror:8 row_mask:0xf bank_mask:0xc")
    A(f"v_mov_b32_dpp v{D+1}, v{D+3} row_ror:8 row_mask:0xf bank_mask:0xc")
    A("v_and_b32 v8, 7, v5")
    A("v_lshlrev_b32 v8, 6, v8")
    A("v_lshl_add_u32 v8, v4, 5, v8")
    A("v_lshrrev_b32 v9, 3, v5")
    A("v_lshl_add_u32 v8, v9, 4, v8")
    A("s_lshl_b32 s57, s32, 12")
    A("s_lshl_b32 s58, s58, 10")
    A("s_add_u32 s57, s57, s58")
    A("s_lshl_b32 s59, s59, 9")
    A("s_add_u32 s57, s57, s59")
    A(f"s_add_u32 s57, s57, {QP_OFF}")
    A(f"v_mov_b32 v{G}, v{D}")
    A(f"v_mov_b32 v{G+1}, s30")
    A(f"v_mov_b32 v{G+2}, v{D+1}")
    A(f"v_mov_b32 v{G+3}, s31")
    if pool:
        A("s_waitcnt vmcnt(0)")
    A("s_mov_b32 exec_hi, 0")
    A(f"buffer_store_dwordx4 {vr(G,4)}, v8, s[36:39], s57 offen sc1")
    A("s_mov_b64 exec, -1")
    stamp(2)
    A("v_lshlrev_b32 v9, 4, v0")
    A("s_lshl_b32 s58, s32, 12")
    A(f"s_add_u32 s58, s58, {QP_OFF}")
    if pubwait & 1:
        A("s_waitcnt vmcnt(0)")
    else:
        A("s_nop 1")
    A("L_H0_POLL:")
    for k in range(4):
        A(f"buffer_load_dwordx4 {vr(G+4*k,4)}, v9, s[36:39], s58 offen offset:{1024*k} sc1")
    A("s_waitcnt vmcnt(0)")
    for k in range(4):
        tagcheck(T, G + 4 * k, k == 0)
    A(f"v_cmp_ne_u32 vcc, 0, v{T}")
    poll_branch("L_H0_POLL")
    A(f"v_add_f32 v{T}, v{G}, v{G+4}")
    A(f"v_add_f32 v{T+1}, v{G+2}, v{G+6}")
    for k in range(2, 4):
        A(f"v_add_f32 v{T}, v{T}, v{G+4*k}")
        A(f"v_add_f32 v{T+1}, v{T+1}, v{G+4*k+2}")
    A(f"v_cvt_pk_bf16_f32 v{T}, v{T}, v{T+1}")
    A("v_lshlrev_b32 v6, 2, v0")
    A(f"ds_write_b32 v6, v{T} offset:{L_Q}")
    A("v_mov_b32 v7, 0")
    A("v_mov_b32 v8, 1")
    A("s_waitcnt lgkmcnt(0)")
    A(f"ds_write_b32 v7, v8 offset:{L_FLAG}")
    stamp(3)
    if pool:
        C("---- H0 continues as the manager of shared tiles ----")
        if mprio:
            A(f"s_setprio {mprio}")
        A("s_mov_b32 s60, 0")
        A("s_mov_b32 s61, 0")
        A("s_mov_b32 s82, 0")
        A("v_lshlrev_b32 v6, 2, v0")
        A(f"v_mov_b32 v9, {OOB}")
        A(f"s_mov_b32 s63, {POOL}")

        def m_issue(i):
            lab = f"L_M_SPIN_{i}"
            A(f"{lab}:")
            A(f"ds_read_b32 v2, v7 offset:{L_FLAG+8}")
            A("s_waitcnt lgkmcnt(0)")
            A("v_readfirstlane_b32 s62, v2")
            A(f"s_add_u32 s62, s62, {LOOK}")
            A(f"s_sub_u32 s62, s62, s60")
            A(f"s_cmp_ge_i32 s62, {NLOC+CH}")
            A(f"s_cbranch_scc1 {lab}_OK")
            A("s_add_u32 s82, s82, 1")
            A(f"s_cmp_lt_u32 s82, {POLL_MAX*16}")
            A(f"s_cbranch_scc1 {lab}")
            A(f"{lab}_OK:")

        def m_atomic(slot):
            A(f"v_mov_b32 v{16+slot}, {CH}")
            A("s_mov_b64 exec, 1")
            if pfake != 1:
                A(f"buffer_atomic_add v{16+slot}, v7, s[36:39], s70 offen sc0 sc1")
            A("s_mov_b64 exec, -1")
            A(f"s_add_u32 s60, s60, {CH}")

        lgch = CH.bit_length() - 1
        assert 1 << lgch == CH
        NP_ = 128 - NLOC

        def m_process(slot):
            if pfake:
                A("s_mov_b32 s62, s61")
                A("v_add_u32 v3, s62, v0")
                A(f"s_mul_i32 s64, s33, {128*4096}")
                A(f"s_add_u32 s64, s64, {NLOC*4096}")
                A("v_lshlrev_b32 v8, 12, v3")
                A("v_add_u32 v8, s64, v8")
                A(f"s_mov_b32 s63, {NP_}")
            elif pmap:
                A(f"v_readfirstlane_b32 s62, v{16+slot}")
                A("v_add_u32 v3, s62, v0")
                A(f"v_lshrrev_b32 v8, {lgch}, v3")
                A("v_and_b32 v10, 7, v8")
                A("v_lshrrev_b32 v8, 3, v8")
                A(f"v_lshlrev_b32 v8, {lgch}, v8")
                A(f"v_and_b32 v11, {CH-1}, v3")
                A("v_add_u32 v8, v8, v11")
                A("v_lshl_add_u32 v8, v10, 7, v8")
                A(f"v_add_u32 v8, {NLOC}, v8")
                A("v_lshlrev_b32 v8, 12, v8")
            else:
                A(f"v_readfirstlane_b32 s62, v{16+slot}")
                A("v_add_u32 v3, s62, v0")
                A("v_lshlrev_b32 v8, 12, v3")
                A(f"v_add_u32 v8, {8*NLOC*4096}, v8")
            A("v_cmp_gt_u32 vcc, s63, v3")
            A("v_cndmask_b32 v8, v9, v8, vcc")
            A(f"s_add_u32 s61, s61, {CH}")
            A(f"s_add_u32 s62, s62, {CH}")
            A(f"s_cmp_gt_u32 s62, {NP_ if pfake else POOL}")
            A(f"s_cselect_b64 exec, -1, {(1<<CH)-1}")
            A(f"ds_write_b32 v6, v8 offset:{L_TAB}")
            A("s_mov_b64 exec, -1")
            A(f"v_add_u32 v6, {4*CH}, v6")
            A("s_cbranch_scc1 L_M_DONE_X")

        if satom:
            A("s_add_u32 s66, s28, s70")
            A("s_addc_u32 s67, s29, 0")
            A("L_M_LOOP:")
            m_issue("S")
            if diag:
                A("s_cmp_lg_u32 s60, 0")
                A("s_cbranch_scc1 L_M_NOST")
                stamp(5)
                A("L_M_NOST:")
            A(f"s_sub_u32 s65, s62, {NLOC}")
            A("s_min_u32 s65, s65, 32")
            if n1:
                A("s_cmp_eq_u32 s60, 0")
                A(f"s_cselect_b32 s64, {n1}, 0")
                A("s_max_u32 s65, s65, s64")
            A("s_mov_b32 s64, s65")
            if pfake != 1:
                A("s_atomic_add s64, s[66:67], 0x0 glc")
            A("s_add_u32 s60, s60, s65")
            A("s_bfm_b64 s[68:69], s65, 0")
            A("s_waitcnt lgkmcnt(0)")
            if pfake:
                A("s_mov_b32 s64, s61")
                A("v_add_u32 v3, s64, v0")
                A(f"s_mul_i32 s62, s33, {128*4096}")
                A(f"s_add_u32 s62, s62, {NLOC*4096}")
                A("v_lshlrev_b32 v8, 12, v3")
                A("v_add_u32 v8, s62, v8")
                A(f"s_mov_b32 s63, {NP_}")
            elif pmap:
                A("v_add_u32 v3, s64, v0")
                A("v_and_b32 v10, 7, v3")
                A("v_lshrrev_b32 v8, 3, v3")
                A("v_lshl_add_u32 v8, v10, 7, v8")
                A(f"v_add_u32 v8, {NLOC}, v8")
                A("v_lshlrev_b32 v8, 12, v8")
            else:
                A("v_add_u32 v3, s64, v0")
                A("v_lshlrev_b32 v8, 12, v3")
                A(f"v_add_u32 v8, {8*NLOC*4096}, v8")
            A("v_cmp_gt_u32 vcc, s63, v3")
            A("v_cndmask_b32 v8, v9, v8, vcc")
            A("s_add_u32 s61, s61, s65")
            A("s_add_u32 s64, s64, s65")
            A(f"s_cmp_{'ge' if xge else 'gt'}_u32 s64, {NP_ if pfake else POOL}")
            A("s_cselect_b64 exec, -1, s[68:69]")
            A(f"ds_write_b32 v6, v8 offset:{L_TAB}")
            A("s_mov_b64 exec, -1")
            A("s_cbranch_scc1 L_M_DONE_X")
            A("s_lshl_b32 s65, s65, 2")
            A("v_add_u32 v6, s65, v6")
            A("s_branch L_M_LOOP")
        else:
            for i in range(KQ - 1):
                m_issue(f"P{i}")
                if i == 0:
                    stamp(5)
                m_atomic(i)
            A("L_M_LOOP:")
            for i in range(KQ):
                m_issue(i)
                m_atomic((KQ - 1 + i) % KQ)
                A(f"s_waitcnt vmcnt({KQ-1})")
                m_process(i % KQ)
            A("s_branch L_M_LOOP")
        A("L_M_DONE_X:")
        if wolate == 1:
            A("v_mov_b32 v8, 1")
            A(f"ds_write_b32 v7, v8 offset:{L_FLAG+16}")
        A("s_waitcnt vmcnt(0) lgkmcnt(0)")
        stamp(7)
        if diag:
            A("s_lshl_b32 s62, s2, 2")
            A("v_mov_b32 v2, s62")
            A("v_mov_b32 v3, s61")
            A("s_mov_b64 exec, 1")
            A("global_store_dword v2, v3, s[26:27]")
            A("s_mov_b64 exec, -1")
    endp()

    C("---- H1 ----")
    A("L_H1:")
    if hprio:
        A(f"s_setprio {hprio}")
    A("v_mov_b32 v2, 0")
    A(f"ds_write_b32 v2, v2 offset:{L_FLAG}")
    A(f"v_mov_b32 v3, {4*NP}")
    A(f"ds_write_b32 v2, v3 offset:{L_FLAG+8}")
    if wolate:
        A(f"ds_write_b32 v2, v2 offset:{L_FLAG+16}")
    if pool:
        A("v_lshlrev_b32 v2, 4, v0")
        for r in range(4):
            A(f"v_mov_b32 v{8+r}, -1")
        for k in range(2):
            A(f"ds_write_b128 v2, v[8:11] offset:{L_TAB+1024*k}")
    A("s_waitcnt lgkmcnt(0)")
    A("s_barrier")
    if noh or h1off:
        endp()
    A("s_lshr_b32 s57, s2, 6")
    A("s_and_b32 s35, s32, 7")
    if mlp5:
        A("s_mul_i32 s57, s2, 135")
        A("s_add_u32 s58, s57, 135")
        A("s_lshr_b32 s57, s57, 8")
        A("s_lshr_b32 s58, s58, 8")
        A("s_cmp_eq_u32 s57, s58")
        A("s_cbranch_scc1 L_H1_EXIT")
        A("s_mul_i32 s34, s57, 52429")
        A("s_lshr_b32 s34, s34, 18")
        A("s_mul_i32 s58, s34, 5")
        A("s_sub_u32 s35, s57, s58")
    elif zmap2:
        A("s_lshl_b32 s34, s33, 2")
        A("s_add_u32 s34, s34, s57")
        A("s_cmp_lt_u32 s33, 3")
        A("s_cbranch_scc1 L_H1_MLP")
        A("s_sub_u32 s58, s57, s33")
        A("s_add_u32 s58, s58, 3")
        A("s_and_b32 s58, s58, 3")
        A("s_mul_i32 s34, s33, 3")
        A("s_add_u32 s34, s34, s58")
        A("s_add_u32 s34, s34, 2")
        A("s_cmp_eq_u32 s58, 0")
        A("s_cbranch_scc1 L_H1_EXIT")
    else:
        A("s_mul_i32 s34, s33, 3")
        A("s_add_u32 s34, s34, s57")
        A("s_cmp_lt_u32 s57, 3")
        A("s_cbranch_scc1 L_H1_MLP")
        A("s_add_u32 s34, s33, 24")
        A("s_cmp_ge_u32 s33, 3")
        A("s_cbranch_scc1 L_H1_EXIT")
    A("L_H1_MLP:")
    get_tags()
    wait_flag("L_H1_QW")
    stamp(0)
    N1 = R1 // 8
    W1 = 100
    W2 = W1 + 4 * N1
    B1 = 14
    VFF = 9
    srd(44, 16, 17, 640 * 3456)
    srd(48, 20, 21, 1728 * 1280)
    srd(52, 18, 19, 3456)
    A("v_lshlrev_b32 v6, 3, v0")
    for k in range(5):
        A(f"ds_read_b64 {vr(XF+2*k,2)}, v6 offset:{L_XN2+512*k}")
    A("v_bfe_u32 v10, v0, 3, 1")
    A("v_and_b32 v7, 7, v0")
    A(f"v_mul_u32_u24 v8, {2*N1}, v4")
    A(f"v_mad_u32_u24 v8, v10, {N1}, v8")
    A(f"v_mul_u32_u24 v3, 3456, v8")
    A("v_lshl_add_u32 v3, v7, 4, v3")
    A(f"s_mul_i32 s56, s35, {R1*3456}")
    A("s_lshl_b32 s57, s34, 7")
    A("s_add_u32 s56, s56, s57")
    if now1:
        A(f"v_mov_b32 v3, {OOB}")
    for t in range(N1):
        A(f"buffer_load_dwordx4 {vr(W1+4*t,4)}, v3, s[44:47], s56 offen{wp}")
        if t < N1 - 1:
            A("s_add_u32 s56, s56, 3456")
    A("v_lshlrev_b32 v11, 3, v5")
    A(f"buffer_load_dwordx2 {vr(B1,2)}, v11, s[52:55], s57 offen")
    A(f"v_mul_u32_u24 v3, {16*1280}, v4")
    A("v_lshl_add_u32 v3, v5, 4, v3")
    A(f"v_mov_b32 v11, {OOB}")
    if not mlp5:
        A("v_cmp_gt_u32 vcc, 10, v5")
        A("v_cndmask_b32 v3, v11, v3, vcc")
    if now2:
        A("v_mov_b32 v3, v11")
    A(f"s_mul_i32 s56, s34, {64*1280}")
    A(f"s_mul_i32 s57, s35, {1280//NC}")
    A("s_add_u32 s56, s56, s57")
    for t in range(16):
        A(f"buffer_load_dwordx4 {vr(W2+4*t,4)}, v3, s[48:51], s56 offen{w2p}")
        if t < 15:
            A("s_add_u32 s56, s56, 1280")
    sel_masks(MK, 0, T, T + 1, False)
    A(f"s_mul_i32 s57, s35, {R1*4}")
    A("v_lshlrev_b32 v8, 2, v8")
    A("v_add_u32 v8, s57, v8")
    A(f"v_mov_b32 v{VFF}, 0xff")
    A("s_waitcnt lgkmcnt(0)")
    for i in range(10):
        A(f"v_and_b32 v{XF+i}, 0xffff0000, v{XF+i}")
    ln(XF, T)
    for k in range(5):
        A(f"ds_write_b64 v6, {vr(XF+2*k,2)} offset:{L_Y2+512*k}")
    A("s_waitcnt lgkmcnt(0)")
    if mlp5:
        for i in range(4):
            A(f"ds_read_b128 {vr(VAL+4*i,4)}, v8 offset:{L_Y2+16*i}")
    else:
        for i in range(5):
            A(f"ds_read_b64 {vr(VAL+2*i,2)}, v8 offset:{L_Y2+8*i}")
    A("s_waitcnt lgkmcnt(0)")
    stamp(1)
    if h1stop == 1:
        A("s_waitcnt vmcnt(0)")
        endp()
    A("s_waitcnt vmcnt(17)")
    stamp(2)
    sel_gemv(N1, VAL, W1, AS, MK, D, D2, T)
    pair_sum([D, D + 1, D + 2, D + 3], [T, T + 1, T + 2, T + 3])
    pack_tags(D, VFF)
    A("v_lshlrev_b32 v8, 5, v5")
    A("v_lshl_add_u32 v8, v4, 4, v8")
    A("s_lshl_b32 s57, s34, 3")
    A("s_add_u32 s57, s57, s35")
    A("s_lshl_b32 s57, s57, 8")
    A(f"s_add_u32 s57, s57, {ZP_OFF}")
    A("s_mov_b32 s60, 0x00ff00ff")
    A("s_mov_b32 s61, 0")
    A("s_mov_b64 exec, s[60:61]")
    A(f"buffer_store_dwordx4 {vr(D,4)}, v8, s[36:39], s57 offen sc1")
    A("s_mov_b64 exec, -1")
    stamp(3)
    if h1stop == 2:
        A("s_waitcnt vmcnt(0)")
        endp()
    A("v_lshlrev_b32 v10, 4, v0")
    A("s_lshl_b32 s58, s34, 11")
    A(f"s_add_u32 s58, s58, {ZP_OFF}")
    if mlp5:
        for r in range(4):
            A(f"v_mov_b32 v{G+4+r}, 0")
    if pubwait & 2:
        A("s_waitcnt vmcnt(0)")
    A("L_H1_POLL:")
    A(f"buffer_load_dwordx4 {vr(G,4)}, v10, s[36:39], s58 offen sc1")
    if mlp5:
        A("s_mov_b64 exec, 0xffff")
    A(f"buffer_load_dwordx4 {vr(G+4,4)}, v10, s[36:39], s58 offen offset:1024 sc1")
    A("s_waitcnt vmcnt(0)")
    if mlp5:
        A("s_mov_b64 exec, -1")
    strip_tags(T, G, True)
    if mlp5:
        A("s_mov_b64 exec, 0xffff")
    strip_tags(T, G + 4, False)
    if mlp5:
        A("s_mov_b64 exec, -1")
    A(f"v_and_b32 v{T}, 0xff, v{T}")
    A(f"v_cmp_ne_u32 vcc, 0, v{T}")
    poll_branch("L_H1_POLL")
    stamp(7)
    if h1stop == 3:
        endp()
    Z = G
    for r in range(4):
        A(f"v_add_f32 v{Z+r}, v{Z+r}, v{G+4+r}")
    swap_add_n([Z + r for r in range(4)], [T + r for r in range(4)], 16)
    swap_add_n([Z + r for r in range(4)], [T + r for r in range(4)], 32)
    c1 = -2.0 * 0.7978845608028654 * LOG2E
    c2 = c1 * 0.044715
    A(f"s_mov_b32 s62, {fl(c2)}")
    for e in range(4):
        z = Z + e
        rbf(z, z)
        if (e & 1) == 0:
            A(f"v_lshlrev_b32 v{T+2}, 16, v{B1+(e>>1)}")
        else:
            A(f"v_and_b32 v{T+2}, 0xffff0000, v{B1+(e>>1)}")
        A(f"v_add_f32 v{z}, v{z}, v{T+2}")
        rbf(z, z)
        A(f"v_mul_f32 v{T+2}, v{z}, v{z}")
        A(f"v_mov_b32 v{T+3}, {fl(c1)}")
        A(f"v_fmac_f32 v{T+3}, s62, v{T+2}")
        A(f"v_mul_f32 v{T+3}, v{T+3}, v{z}")
        A(f"v_exp_f32 v{T+3}, v{T+3}")
        A(f"v_add_f32 v{T+3}, 1.0, v{T+3}")
        A(f"v_rcp_f32 v{T+3}, v{T+3}")
        A(f"v_mul_f32 v{z}, v{z}, v{T+3}")
        A(f"v_cvt_pk_bf16_f32 v{z}, v{z}, v{z}")
    A("v_lshlrev_b32 v6, 4, v5")
    A(f"ds_write_b128 v6, {vr(Z,4)} offset:{L_HH2}")
    A("v_lshlrev_b32 v7, 6, v4")
    A("s_waitcnt lgkmcnt(0)")
    for i in range(4):
        A(f"ds_read_b128 {vr(VAL+4*i,4)}, v7 offset:{L_HH2+16*i}")
    sel_masks(MK, 0, T + 2, T + 3, True)
    A("s_waitcnt lgkmcnt(0)")
    sel_gemv(16, VAL, W2, AS, MK, D, D2, T)
    pack_tags(D, VFF)
    A(f"s_mul_i32 s57, s34, {NC}")
    A("s_add_u32 s57, s57, s35")
    A(f"s_mul_i32 s57, s57, {CB}")
    A(f"s_add_u32 s57, s57, {BP_OFF}")
    A(f"s_mov_b32 s60, {'0xffffffff' if mlp5 else '0x03ff03ff'}")
    A("s_mov_b32 s61, 0")
    A("s_mov_b64 exec, s[60:61]")
    A(f"buffer_store_dwordx4 {vr(D,4)}, v8, s[36:39], s57 offen sc1")
    A("s_mov_b64 exec, -1")
    stamp(4)
    A("L_H1_EXIT:")
    endp()

    C("---- final consumer: 8 output columns ----")
    A("L_FIN:")
    A(f"s_cmp_ge_u32 s2, {NFIN}")
    A("s_cbranch_scc1 L_END")
    if noh or notail:
        A("s_branch L_END")
    XP = 10; B2P = 12; BV = 14
    FA = 20
    FB = 36
    FT = 40
    srd(40, 4, 5, 1280)
    srd(44, 22, 23, 1280)
    srd(48, 24, 25, 1280)
    A("s_lshl_b32 s57, s2, 4")
    A("v_and_b32 v6, 1, v0")
    A("v_lshlrev_b32 v2, 3, v6")
    A(f"buffer_load_dwordx2 {vr(XP,2)}, v2, s[40:43], s57 offen")
    A(f"buffer_load_dwordx2 {vr(B2P,2)}, v2, s[44:47], s57 offen")
    A("v_lshrrev_b32 v7, 1, v0")
    if mlp5:
        A("s_lshr_b32 s58, s2, 4")
        A("s_and_b32 s59, s2, 15")
    else:
        A("s_mul_i32 s58, s2, 6554")
        A("s_lshr_b32 s58, s58, 16")
        A("s_mul_i32 s59, s58, 10")
        A("s_sub_u32 s59, s2, s59")
    A(f"s_mul_i32 s58, s58, {CB}")
    A("s_lshl_b32 s59, s59, 5")
    A("s_add_u32 s58, s58, s59")
    A(f"s_add_u32 s58, s58, {BP_OFF}")
    A(f"v_mul_u32_u24 v3, {NC*CB}, v7")
    A("v_lshl_add_u32 v3, v6, 4, v3")
    A("s_cmp_ge_u32 s2, 40")
    A("s_cselect_b32 s60, 1, 0")
    A("s_mul_i32 s61, s60, 40")
    A("s_sub_u32 s61, s2, s61")
    A("s_lshl_b32 s61, s61, 5")
    A("s_mul_i32 s60, s60, 1280")
    A("s_add_u32 s60, s60, s61")
    A(f"s_add_u32 s60, s60, {AP_OFF}")
    for k in range(1, 4):
        A(f"s_add_u32 s{60+k}, s60, {k*32*2560}")
    A("v_mul_u32_u24 v9, 2560, v7")
    A("v_lshl_add_u32 v9, v6, 4, v9")
    A("s_barrier")
    get_tags()
    for r in range(4):
        A(f"v_mov_b32 v{FB+r}, 0")
    A("s_mov_b32 s64, -1")
    A("s_mov_b32 s65, 0x003fffff")
    stamp(4)
    A("s_barrier")
    stamp(0)

    def lanes_sum(regs, tmps):
        for s_ in (2, 4, 8):
            for v in regs:
                A(f"v_add_f32_dpp v{v}, v{v}, v{v} row_ror:{s_} {DPPM}")
        swap_add_n(regs, tmps, 16)
        swap_add_n(regs, tmps, 32)

    A("s_mov_b64 exec, s[64:65]")
    A("L_FIN_POLLB:")
    A(f"buffer_load_dwordx4 {vr(FB,4)}, v3, s[36:39], s58 offen sc1")
    A("s_waitcnt vmcnt(0)")
    strip_tags(FT, FB, True)
    A(f"v_and_b32 v{FT}, 0xff, v{FT}")
    A(f"v_cmp_ne_u32 vcc, 0, v{FT}")
    poll_branch("L_FIN_POLLB")
    A("s_mov_b64 exec, -1")
    stamp(1)
    if not b3:
        for k in range(4):
            A(f"buffer_load_dwordx4 {vr(FA+4*k,4)}, v9, s[36:39], s{60+k} offen sc1")
    lanes_sum([FB + r for r in range(4)], [FT + r for r in range(4)])
    for e in range(4):
        rbf(FB + e, FB + e)
        if (e & 1) == 0:
            A(f"v_lshlrev_b32 v{FT}, 16, v{B2P+(e>>1)}")
        else:
            A(f"v_and_b32 v{FT}, 0xffff0000, v{B2P+(e>>1)}")
        A(f"v_add_f32 v{FB+e}, v{FB+e}, v{FT}")
        rbf(BV + e, FB + e)
    XFP = FB
    for e in range(4):
        if (e & 1) == 0:
            A(f"v_lshlrev_b32 v{XFP+e}, 16, v{XP+(e>>1)}")
        else:
            A(f"v_and_b32 v{XFP+e}, 0xffff0000, v{XP+(e>>1)}")
    if not b3:
        A("s_branch L_FIN_CHK")
        A("L_FIN_POLLA:")
        for k in range(4):
            A(f"buffer_load_dwordx4 {vr(FA+4*k,4)}, v9, s[36:39], s{60+k} offen sc1")
        A("L_FIN_CHK:")
        for k in range(4):
            A(f"s_waitcnt vmcnt({3-k})")
            strip_tags(FT, FA + 4 * k, k == 0)
        A(f"v_and_b32 v{FT}, 0xff, v{FT}")
        A(f"v_cmp_ne_u32 vcc, 0, v{FT}")
        poll_branch("L_FIN_POLLA")
    else:
        MS = [66, 68, 70, 76]
        SB = 64
        for k in range(4):
            A(f"s_mov_b64 s[{MS[k]}:{MS[k]+1}], -1")
        A("s_barrier")
        stamp(3)

        def f_issue(i):
            for k in range(4):
                A(f"s_mov_b64 exec, s[{MS[k]}:{MS[k]+1}]")
                A(f"buffer_load_dwordx4 {vr(SB+16*i+4*k,4)}, v9, s[36:39], s{60+k} offen sc1")

        def f_check(i, behind):
            for k in range(4):
                src = SB + 16 * i + 4 * k
                dst = FA + 4 * k
                A(f"s_waitcnt vmcnt({behind+3-k})")
                A(f"s_mov_b64 exec, s[{MS[k]}:{MS[k]+1}]")
                for r in range(4):
                    A(f"v_xor_b32 v{dst+r}, s{72+r}, v{src+r}")
                A(f"v_or3_b32 v{FT}, v{dst}, v{dst+1}, v{dst+2}")
                A(f"v_or_b32 v{FT}, v{FT}, v{dst+3}")
                A(f"v_and_b32 v{FT}, 0xff, v{FT}")
                A(f"v_cmp_ne_u32 vcc, 0, v{FT}")
                A(f"s_mov_b64 s[{MS[k]}:{MS[k]+1}], vcc")

        A("L_FIN_SLOW:")
        f_issue(0)
        f_check(0, 0)
        A(f"s_bcnt1_i32_b64 s59, s[{MS[0]}:{MS[0]+1}]")
        for k in range(1, 4):
            A(f"s_bcnt1_i32_b64 s64, s[{MS[k]}:{MS[k]+1}]")
            A("s_add_u32 s59, s59, s64")
        A("s_cmp_eq_u32 s59, 0")
        A("s_cbranch_scc1 L_FIN_GOT")
        A("s_add_u32 s80, s80, 1")
        A(f"s_cmp_ge_u32 s80, {POLL_MAX}")
        A("s_cbranch_scc1 L_FIN_GOT")
        if fdense > 1:
            A(f"s_cmp_gt_u32 s59, {fthr}")
            A("s_cbranch_scc1 L_FIN_SLOW")
            for i in range(fdense):
                f_issue(i)
            A("L_FIN_DENSE:")
            for i in range(fdense):
                f_check(i, 4 * (fdense - 1))
                A(f"s_or_b64 s[64:65], s[{MS[0]}:{MS[0]+1}], s[{MS[1]}:{MS[1]+1}]")
                A(f"s_or_b64 s[64:65], s[64:65], s[{MS[2]}:{MS[2]+1}]")
                A(f"s_or_b64 s[64:65], s[64:65], s[{MS[3]}:{MS[3]+1}]")
                A("s_cbranch_scc0 L_FIN_GOT")
                f_issue(i)
            A("s_add_u32 s80, s80, 1")
            A(f"s_cmp_lt_u32 s80, {POLL_MAX}")
            A("s_cbranch_scc1 L_FIN_DENSE")
        else:
            A("s_branch L_FIN_SLOW")
        A("L_FIN_GOT:")
        A("s_mov_b64 exec, -1")
    stamp(2)
    for r in range(4):
        A(f"v_add_f32 v{FA+r}, v{FA+r}, v{FA+4+r}")
        A(f"v_add_f32 v{FA+8+r}, v{FA+8+r}, v{FA+12+r}")
    for r in range(4):
        A(f"v_add_f32 v{FA+r}, v{FA+r}, v{FA+8+r}")
    lanes_sum([FA + r for r in range(4)], [FT + r for r in range(4)])
    for e in range(4):
        rbf(FA + e, FA + e)
        A(f"v_add_f32 v{FA+e}, v{FA+e}, v{XFP+e}")
        rbf(FA + e, FA + e)
        A(f"v_add_f32 v{FA+e}, v{FA+e}, v{BV+e}")
    A(f"v_cvt_pk_bf16_f32 v{FA}, v{FA}, v{FA+1}")
    A(f"v_cvt_pk_bf16_f32 v{FA+1}, v{FA+2}, v{FA+3}")
    A("s_mov_b64 exec, 3")
    A(f"buffer_store_dwordx2 {vr(FA,2)}, v2, s[48:51], s57 offen")
    A("s_cmp_lg_u32 s2, 0")
    A("s_cbranch_scc1 L_FIN_DONE")
    A("s_mov_b64 exec, 1")
    A("v_mov_b32 v4, s30")
    A("v_mov_b32 v5, s31")
    A(f"v_mov_b32 v6, {R_OFF}")
    A("buffer_store_dwordx2 v[4:5], v6, s[36:39], 0 offen sc1")
    A("L_FIN_DONE:")
    stamp(5)
    if b3 and fdense > 1:
        A("s_waitcnt vmcnt(0)")
    endp()

    C("---- H2 ----")
    A("L_H2:")
    if hprio:
        A(f"s_setprio {hprio}")
    A("s_barrier")
    if noh or h2off:
        endp()
    get_tags()
    if wolate < 4:
        wait_flag("L_H2_QW", off=16 if wolate else 0)
    stamp(0)
    WO = 100
    P = 16
    MK2 = 40
    AS2 = 44
    DA = 60
    GO = 80
    VFF2 = 15
    srd(40, 12, 13, 4096 * 1280)
    A("s_lshr_b32 s58, s33, 1")
    A("s_and_b32 s59, s33, 1")
    A("s_lshl_b32 s56, s32, 7")
    A("s_lshl_b32 s57, s58, 5")
    A("s_add_u32 s56, s56, s57")
    A("s_mul_i32 s56, s56, 1280")
    A("s_mul_i32 s57, s59, 640")
    A("s_add_u32 s56, s56, s57")
    A("s_add_u32 s57, s56, 2560")
    A("v_lshrrev_b32 v6, 3, v0")
    A("v_and_b32 v7, 7, v0")
    A("v_mul_u32_u24 v3, 5120, v6")
    A("v_lshl_add_u32 v3, v7, 4, v3")
    def wo_loads():
        for u in range(4):
            for v in range(5):
                so = "s56" if u < 2 else "s57"
                A(f"buffer_load_dwordx4 {vr(WO+4*(u*5+v),4)}, v3, s[40:43], {so} offen offset:{(u&1)*1280+128*v}{wp}")
    if wolate < 4:
        wo_loads()
    sel_masks(MK2, 0, 8, 9, False)
    A(f"v_mov_b32 v{VFF2}, 0xff")
    A("v_and_b32 v2, 31, v0")
    A("v_lshlrev_b32 v2, 4, v2")
    A("v_mov_b32 v10, 0")
    A("s_lshl_b32 s60, s2, 9")
    A(f"s_add_u32 s60, s60, {OP_OFF}")
    A("s_lshl_b32 s61, s32, 7")
    A(f"s_add_u32 s61, s61, {ML_OFF}")
    A("s_lshl_b32 s62, s33, 4")
    A("s_add_u32 s62, s62, s61")
    A("s_lshl_b32 s63, s32, 12")
    A("s_lshl_b32 s64, s58, 7")
    A("s_add_u32 s63, s63, s64")
    A(f"s_add_u32 s63, s63, {OP_OFF}")
    A("v_lshlrev_b32 v11, 9, v7")
    A("v_lshl_add_u32 v11, v6, 4, v11")
    A("v_lshlrev_b32 v12, 4, v7")
    A("v_lshrrev_b32 v8, 3, v5")
    A("v_lshrrev_b32 v9, 1, v4")
    A("v_lshl_add_u32 v8, v8, 1, v9")
    A("v_and_b32 v9, 7, v5")
    A("v_lshlrev_b32 v13, 5, v9")
    A("v_and_b32 v9, 1, v4")
    A("v_lshl_add_u32 v13, v9, 4, v13")
    A("v_lshl_add_u32 v13, v8, 8, v13")
    A("v_lshlrev_b32 v14, 5, v5")
    A("v_lshl_add_u32 v14, v4, 4, v14")
    A("s_mul_i32 s64, s2, 1280")
    A(f"s_add_u32 s64, s64, {AP_OFF}")
    A("s_mov_b32 s66, 0x00ff00ff")
    A("s_mov_b32 s67, 0")
    if not wolate:
        A("s_waitcnt vmcnt(0)")
    stamp(4)
    if notail:
        endp()
    A("s_barrier")
    stamp(5)
    if wolate == 5:
        wo_loads()
    for w in range(4):
        A(f"ds_read_b64 {vr(P+16+2*w,2)}, v10 offset:{L_PART+576*w+512}")
    for w in range(4):
        A(f"ds_read_b128 {vr(P+4*w,4)}, v2 offset:{L_PART+576*w}")
    M = 2 + 4
    A("s_waitcnt lgkmcnt(4)")
    A(f"v_max3_f32 v8, v{P+16}, v{P+18}, v{P+20}")
    A(f"v_max_f32 v8, v8, v{P+22}")
    for w in range(4):
        A(f"v_sub_f32 v{P+16+2*w}, v{P+16+2*w}, v8")
    for w in range(4):
        A(f"v_mul_f32 v{P+16+2*w}, {fl(LOG2E)}, v{P+16+2*w}")
    for w in range(4):
        A(f"v_exp_f32 v{P+16+2*w}, v{P+16+2*w}")
    A(f"v_mov_b32 v{GO+4}, v8")
    A(f"v_mov_b32 v{GO+5}, s30")
    A(f"v_mov_b32 v{GO+7}, s31")
    A(f"v_mul_f32 v{GO+6}, v{P+16}, v{P+17}")
    for w in range(1, 4):
        A(f"v_fmac_f32 v{GO+6}, v{P+16+2*w}, v{P+17+2*w}")
    A("s_waitcnt lgkmcnt(0)")
    for r in range(4):
        A(f"v_mul_f32 v{GO+r}, v{P+16}, v{P+r}")
    for w in range(1, 4):
        for r in range(4):
            A(f"v_fmac_f32 v{GO+r}, v{P+16+2*w}, v{P+4*w+r}")
    pack_tags(GO, VFF2)
    A("s_mov_b32 exec_hi, 0")
    A(f"buffer_store_dwordx4 {vr(GO,4)}, v2, s[36:39], s60 offen sc1")
    A("s_mov_b64 exec, 1")
    A(f"buffer_store_dwordx4 {vr(GO+4,4)}, v10, s[36:39], s62 offen sc1")
    A("s_mov_b64 exec, -1")
    if wolate == 4:
        wo_loads()
    stamp(6)
    GI = P
    if not hdense:
        A("L_H2_POLL:")
        A(f"buffer_load_dwordx4 {vr(GI+4,4)}, v12, s[36:39], s61 offen sc1")
        A(f"buffer_load_dwordx4 {vr(GI,4)}, v11, s[36:39], s63 offen sc1")
        A("s_waitcnt vmcnt(0)")
        strip_tags(8, GI, True)
        A("v_and_b32 v8, 0xff, v8")
        tagcheck(8, GI + 4, False)
        A("v_cmp_ne_u32 vcc, 0, v8")
        poll_branch("L_H2_POLL")
    else:
        HS = 184
        A("s_mov_b64 s[68:69], -1")

        def h_issue(i):
            A(f"buffer_load_dwordx4 {vr(HS+8*i+4,4)}, v12, s[36:39], s61 offen sc1")
            A(f"buffer_load_dwordx4 {vr(HS+8*i,4)}, v11, s[36:39], s63 offen sc1")

        def h_check(i, behind):
            src = HS + 8 * i
            A(f"s_waitcnt vmcnt({behind})")
            for r in range(4):
                A(f"v_xor_b32 v{GI+r}, s{72+r}, v{src+r}")
            A(f"v_mov_b32 v{GI+4}, v{src+4}")
            A(f"v_mov_b32 v{GI+6}, v{src+6}")
            A(f"v_or3_b32 v8, v{GI}, v{GI+1}, v{GI+2}")
            A(f"v_or_b32 v8, v8, v{GI+3}")
            A("v_and_b32 v8, 0xff, v8")
            tagcheck(8, src + 4, False)
            A("v_cmp_ne_u32 vcc, 0, v8")
            A("s_mov_b64 exec, vcc")
            A("s_cbranch_vccz L_H2_GOT")

        h_issue(0)
        h_check(0, 0)
        for i in range(hdense):
            h_issue(i)
        A("L_H2_DENSE:")
        for i in range(hdense):
            h_check(i, 2 * (hdense - 1))
            h_issue(i)
        A("s_add_u32 s80, s80, 1")
        A(f"s_cmp_lt_u32 s80, {POLL_MAX}")
        A("s_cbranch_scc1 L_H2_DENSE")
        A("L_H2_GOT:")
        A("s_mov_b64 exec, -1")
    stamp(7)
    mm, ll = GI + 4, GI + 6
    A(f"v_mov_b32 v8, v{mm}")
    oct_reduce([8], "v_max_f32")
    A(f"v_sub_f32 v8, v{mm}, v8")
    A(f"v_mul_f32 v8, {fl(LOG2E)}, v8")
    A("v_exp_f32 v8, v8")
    A(f"v_mul_f32 v9, v8, v{ll}")
    for r in range(4):
        A(f"v_mul_f32 v{GI+r}, v8, v{GI+r}")
    oct_reduce([9, GI, GI + 1, GI + 2, GI + 3])
    A("v_rcp_f32 v9, v9")
    for r in range(4):
        A(f"v_mul_f32 v{GI+r}, v{GI+r}, v9")
    for r in range(4):
        A(f"v_cvt_pk_bf16_f32 v{GI+r}, v{GI+r}, v{GI+r}")
    for u in range(4):
        for r in range(4):
            A(f"v_and_b32 v{AS2+4*u+r}, v{GI+u}, v{MK2+r}")
    for u in range(4):
        for v in range(5):
            c = "0" if u == 0 else vr(DA + 4 * v, 4)
            A(f"v_mfma_f32_16x16x32_bf16 {vr(DA+4*v,4)}, {vr(AS2+4*u,4)}, {vr(WO+4*(u*5+v),4)}, {c}")
    for a in (0, 2):
        for r in range(4):
            A(f"v_permlane32_swap_b32 v{DA+4*a+r}, v{DA+4*(a+1)+r}")
    for a in (0, 2):
        for r in range(4):
            A(f"v_add_f32_dpp v{DA+4*a+r}, v{DA+4*(a+1)+r}, v{DA+4*a+r} row_ror:8 {DPPM}")
    for r in range(4):
        A(f"v_mov_b32_dpp v{DA+r}, v{DA+8+r} row_ror:8 row_mask:0xf bank_mask:0xc")
    pack_tags(DA, VFF2)
    A(f"buffer_store_dwordx4 {vr(DA,4)}, v13, s[36:39], s64 offen sc1")
    pair_sum([DA + 16 + r for r in range(4)], [DA + 4 + r for r in range(4)])
    pack_tags(DA + 16, VFF2)
    A("s_mov_b64 exec, s[66:67]")
    A(f"buffer_store_dwordx4 {vr(DA+16,4)}, v14, s[36:39], s64 offen offset:1024 sc1")
    stamp(3)
    if b3:
        A(f"s_cmp_ge_u32 s2, {NFIN}")
        A("s_cbranch_scc1 L_H2_END")
        A("s_barrier")
        A("L_H2_END:")
    if hdense:
        A("s_waitcnt vmcnt(0)")
    endp()

    C("---- streamers ----")
    A("L_STREAM:")
    stamp(5)
    if sprio:
        A(f"s_setprio {sprio}")
    RB = 64
    NS = NP
    AQ = 8
    MKS = 24
    DSC = 28
    DO = 32
    PA = 36
    vS, vT, vP, vP2s, vP2, vL, vM, vT2 = 44, 45, 46, 47, 48, 49, 50, 51
    vK, vV = 2, 3
    vTK, vZ, vOne = 56, 57, 58
    assert RB + 32 * NS <= 256
    A("s_lshl_b32 s56, s32, 22")
    A("s_add_u32 s40, s6, s56")
    A("s_addc_u32 s41, s7, 0")
    A(f"s_mov_b32 s42, {4<<20}")
    A("s_mov_b32 s43, 0x20000")
    A("s_add_u32 s44, s8, s56")
    A("s_addc_u32 s45, s9, 0")
    A(f"s_mov_b32 s46, {4<<20}")
    A("s_mov_b32 s47, 0x20000")
    A(f"v_lshlrev_b32 v{vK}, 8, v5")
    A(f"v_lshl_add_u32 v{vK}, v4, 4, v{vK}")
    A(f"v_lshlrev_b32 v{vV}, 4, v0")
    A(f"s_mul_i32 s72, s33, {(128 if (pmap or pfake) else NLOC)*4096}")
    A("s_sub_u32 s57, s3, 4")
    A("s_lshl_b32 s57, s57, 12")
    A("s_add_u32 s56, s72, s57")
    SOFF = 60

    def req_ticket():
        A("s_mov_b64 exec, 1")
        A(f"ds_add_rtn_u32 v{vTK}, v{vZ}, v{vOne} offset:{L_FLAG+8}")
        A("s_mov_b64 exec, -1")

    def slot_regs(slot):
        return RB + 32 * slot

    def loads(slot):
        b = slot_regs(slot)
        for kk in range(4):
            A(f"buffer_load_dwordx4 {vr(b+4*kk,4)}, v{vK}, s[40:43], s{SOFF+slot} offen offset:{64*kk}{kp}")
        for u in range(4):
            A(f"buffer_load_dwordx4 {vr(b+16+4*u,4)}, v{vV}, s[44:47], s{SOFF+slot} offen offset:{1024*u}{kp}")

    iu = [0]

    def issue_static(slot):
        A(f"s_mov_b32 s{SOFF+slot}, s56")
        A("s_add_u32 s56, s56, 16384")
        loads(slot)

    def issue(slot):
        A("s_waitcnt lgkmcnt(0)")
        A(f"v_readfirstlane_b32 s58, v{vTK}")
        A("s_lshl_b32 s59, s58, 12")
        A("s_add_u32 s59, s59, s72")
        A(f"s_cmp_lt_u32 s58, {NLOC}")
        if pool:
            iu[0] += 1
            u = iu[0]
            A(f"s_cbranch_scc1 L_TK_{u}")
            A("s_lshl_b32 s58, s58, 2")
            A(f"v_mov_b32 v{vT}, s58")
            A("s_mov_b32 s82, 0")
            A(f"L_TB_{u}:")
            A(f"ds_read_b32 v{vT2}, v{vT} offset:{L_TAB-4*NLOC}")
            A("s_waitcnt lgkmcnt(0)")
            A(f"v_readfirstlane_b32 s59, v{vT2}")
            A("s_cmp_lg_u32 s59, -1")
            A(f"s_cbranch_scc1 L_T{'D' if wolate == 2 else 'K'}_{u}")
            if diag:
                A("s_add_u32 s79, s79, 1")
            A("s_add_u32 s82, s82, 1")
            A(f"s_cmp_lt_u32 s82, {POLL_MAX*16}")
            A(f"s_cbranch_scc1 L_TB_{u}")
            if wolate == 2:
                A(f"L_TD_{u}:")
                A(f"s_cmp_lt_u32 s59, {OOB}")
                A(f"s_cbranch_scc1 L_TK_{u}")
                A(f"ds_write_b32 v{vZ}, v{vOne} offset:{L_FLAG+16}")
            A(f"L_TK_{u}:")
            A(f"s_mov_b32 s{SOFF+slot}, s59")
        else:
            A(f"s_cselect_b32 s{SOFF+slot}, s59, {OOB}")
        loads(slot)
        req_ticket()

    if diag >= 2:
        A("v_mov_b32 v63, 0")
        A("s_mov_b32 m0, 0")
        A("s_mov_b32 s76, 0")
    for k in range(min(b0early, DS)):
        issue_static(k)
    stamp(7)
    A("s_barrier")
    stamp(0)
    for k in range(min(b0early, DS), min(DS, NP)):
        issue_static(k)
    A(f"v_mov_b32 v{vZ}, 0")
    A(f"v_mov_b32 v{vOne}, 1")
    sel_masks(MKS, 0, vT, vT2, True)
    A(f"v_mov_b32 v{vM}, 0xff800000")
    A(f"v_mov_b32 v{vL}, 0")
    for r in range(4):
        A(f"v_mov_b32 v{DO+r}, 0")
    A("v_lshlrev_b32 v6, 4, v4")
    A("s_mov_b32 s81, 0")
    if diag:
        A("s_mov_b32 s79, 0")
    for k in range(DS, NP):
        A("s_cmp_lg_u32 s81, 0")
        A(f"s_cbranch_scc1 L_FILL_{k}")
        A(f"s_waitcnt vmcnt({PER*(DS-1)})")
        read_flag(vT, 81)
        A(f"L_FILL_{k}:")
        issue_static(k)
    stamp(1)
    wait_flag("L_S_QW", vT, 81)
    for kk in range(4):
        A(f"ds_read_b128 {vr(AQ+4*kk,4)}, v6 offset:{L_Q+64*kk}")
    A("s_waitcnt lgkmcnt(0)")
    req_ticket()
    stamp(2)

    uid = [0]

    def step(slot, wait, issue_slot):
        uid[0] += 1
        u = uid[0]
        b = slot_regs(slot)
        A(f"s_cmp_ge_u32 s{SOFF+slot}, {OOB}")
        A("s_cbranch_scc1 L_SDONE")
        A(f"s_waitcnt vmcnt({wait})")
        if diag >= 2:
            A("s_waitcnt lgkmcnt(0)")
            A("v_writelane_b32 v63, s76, m0")
            A("s_memrealtime s[76:77]")
            A("s_add_u32 m0, m0, 1")
        if issue_slot is not None:
            issue(issue_slot)
        for kk in range(4):
            c = "0" if kk == 0 else vr(DSC, 4)
            A(f"v_mfma_f32_16x16x32_bf16 {vr(DSC,4)}, {vr(AQ+4*kk,4)}, {vr(b+4*kk,4)}, {c}")
        rbf(vT, DSC)
        A(f"v_mul_f32 v{vT}, {fl(SCALE)}, v{vT}")
        rbf(vS, vT)
        A(f"v_cmp_gt_f32 vcc, v{vS}, v{vM}")
        A(f"s_cbranch_vccz L_NORESC_{u}")
        A(f"v_max_f32_dpp v{vT}, v{vS}, v{vS} row_ror:8 {DPPM}")
        for s in (4, 2, 1):
            A(f"v_max_f32_dpp v{vT}, v{vT}, v{vT} row_ror:{s} {DPPM}")
        A(f"v_max_f32 v{vT}, v{vT}, v{vM}")
        A(f"v_sub_f32 v{vT2}, v{vM}, v{vT}")
        A(f"v_mul_f32 v{vT2}, {fl(LOG2E)}, v{vT2}")
        A(f"v_exp_f32 v{vT2}, v{vT2}")
        A(f"v_mov_b32 v{vM}, v{vT}")
        A(f"v_mul_f32 v{vL}, v{vL}, v{vT2}")
        for r in range(4):
            A(f"v_mul_f32 v{DO+r}, v{DO+r}, v{vT2}")
        A(f"L_NORESC_{u}:")
        A(f"v_sub_f32 v{vT}, v{vS}, v{vM}")
        A(f"v_mul_f32 v{vT}, {fl(LOG2E)}, v{vT}")
        A(f"v_exp_f32 v{vP}, v{vT}")
        A(f"v_cvt_pk_bf16_f32 v{vP2s}, v{vP}, v{vP}")
        A(f"v_cvt_pk_bf16_f32 v{vP2}, v{vP}, v{vP}")
        A(f"v_add_f32 v{vL}, v{vL}, v{vP}")
        A(f"v_mov_b32_dpp v{vP2}, v{vP2s} row_shl:1 row_mask:0x2 bank_mask:0xf")
        A(f"v_mov_b32_dpp v{vP2}, v{vP2s} row_shl:2 row_mask:0x4 bank_mask:0xf")
        A(f"v_mov_b32_dpp v{vP2}, v{vP2s} row_shl:3 row_mask:0x8 bank_mask:0xf")

        def ands(uu):
            a = PA + 4 * (uu & 1)
            for r in range(4):
                A(f"v_and_b32_dpp v{a+r}, v{vP2}, v{MKS+r} row_newbcast:{4*uu} {DPPM}")

        def pv(uu):
            a = PA + 4 * (uu & 1)
            A(f"v_mfma_f32_16x16x32_bf16 {vr(DO,4)}, {vr(a,4)}, {vr(b+16+4*uu,4)}, {vr(DO,4)}")
        ands(0); ands(1); pv(0); ands(2); pv(1); ands(3); pv(2); pv(3)

    RS = DIST + 1
    assert RS <= NP
    first = NP - RS
    for n in range(first):
        step(n, PER * (NP - 1 - n), None)
    step(first, PER * (RS - 1), None)
    A("L_SLOOP:")
    for i in range(RS):
        cons = first + (i + 1) % RS
        free = first + i % RS
        step(cons, PER * (DIST - 1), free)
    A("s_branch L_SLOOP")

    A("L_SDONE:")
    if wolate == 3:
        A(f"ds_write_b32 v{vZ}, v{vOne} offset:{L_FLAG+16}")
    stamp(3)
    if diag and pool:
        A("s_lshl_b32 s58, s2, 2")
        A("s_add_u32 s58, s58, s3")
        A("s_lshl_b32 s58, s58, 2")
        A("s_add_u32 s58, s58, 1008")
        A("v_mov_b32 v60, s58")
        A("v_mov_b32 v61, s79")
        A("s_mov_b64 exec, 1")
        A("global_store_dword v60, v61, s[26:27]")
        A("s_mov_b64 exec, -1")
    if diag >= 2:
        A("s_waitcnt vmcnt(0) lgkmcnt(0)")
        A("v_writelane_b32 v63, s76, m0")
        A("s_lshl_b32 s58, s2, 2")
        A("s_add_u32 s58, s58, s3")
        A("s_sub_u32 s58, s58, 4")
        A("s_lshl_b32 s58, s58, 8")
        A(f"s_add_u32 s58, s58, {TS2_OFF}")
        A("v_lshlrev_b32 v62, 2, v0")
        A("buffer_store_dword v63, v62, s[36:39], s58 offen")
    row_sum(vL)
    A("v_lshlrev_b32 v6, 5, v5")
    A("v_lshl_add_u32 v6, v4, 4, v6")
    A("s_sub_u32 s58, s3, 4")
    A("s_mul_i32 s58, s58, 576")
    A("v_add_u32 v6, s58, v6")
    A("v_mov_b32 v7, s58")
    A(f"v_mov_b32 v52, v{vM}")
    A(f"v_mov_b32 v53, v{vL}")
    A("s_mov_b32 exec_hi, 0")
    A(f"ds_write_b128 v6, {vr(DO,4)} offset:{L_PART}")
    A("s_mov_b64 exec, 1")
    A(f"ds_write_b64 v7, v[52:53] offset:{L_PART+512}")
    A("s_mov_b64 exec, -1")
    A("s_waitcnt lgkmcnt(0)")
    A("s_barrier")
    stamp(4)
    flush_stamps()
    A("L_END:")
    A("s_endpgm")

    L = [x for x in L if x is not None]
    out, nins = hz.fix(L)
    out.append('.section .rodata,"a"')
    out.append(".p2align 6")
    out.append(f".amdhsa_kernel {NAME}")
    out.append("  .amdhsa_next_free_vgpr 256")
    out.append("  .amdhsa_next_free_sgpr 102")
    out.append("  .amdhsa_accum_offset 256")
    out.append("  .amdhsa_group_segment_fixed_size 0")
    out.append("  .amdhsa_kernarg_size 104")
    out.append("  .amdhsa_user_sgpr_count 2")
    out.append("  .amdhsa_user_sgpr_kernarg_segment_ptr 1")
    out.append("  .amdhsa_system_sgpr_workgroup_id_x 1")
    out.append(".end_amdhsa_kernel")
    return "\n".join(out) + "\n"


def parse_spec(spec):
    kw = {}
    if spec:
        for it in spec.split(","):
            k, v = it.split("=")
            try:
                v = int(v)
            except ValueError:
                v = v.replace("+", " ")
            kw[k] = v
    return kw


if __name__ == "__main__":
    spec = sys.argv[1] if len(sys.argv) > 1 else ""
    sys.stdout.write(gen(**parse_spec(spec)))
```

```python
import sys, struct, os
sys.path.insert(0, os.path.dirname(os.path.abspath(__file__)))
import hz

NAME = "parallel_sum__gqa_block_cached__mixer_channel_mlp__decode_kernel"

WS_SIZE = 0x400000
R_OFF = 0x0
QP_OFF = 0x10000
ZP_OFF = 0x30000
OP_OFF = 0x40000
ML_OFF = 0x60000
AP_OFF = 0x70000
BP_OFF = 0xC0000
CNT_OFF = 0x110000
TS_OFF = 0x180000
TS2_OFF = 0x200000
TAG0 = 0x5BD1E995
TAG1 = 0x2545F491

L_XN2 = 0
L_Y2 = 2560
L_Q = 5120
L_PART = 5376
L_HH2 = 7680
L_FLAG = 7936
L_TAB = 8192

OOB = 0x40000000
POLL_MAX = 200000
NFIN = 80


def f2u(x):
    return struct.unpack("<I", struct.pack("<f", x))[0]


def fl(x):
    return "0x%08x" % f2u(x)


LOG2E = 1.4426950408889634
SCALE = 128 ** -0.5


def gen(NP=6, DIST=2, DS=2, kpol="nt", wpol="nt", diag=0, header=True, b0early=0, pubwait=3,
        noq=0, noh=0, h1off=0, h2off=0, notail=0, sprio=0, hprio=0, qprio=0,
        pool=0, NLOC=112, CH=2, KQ=3, LOOK=7, zmap2=0, mprio=0, pmap=0, pfake=0, satom=0, h1stop=9, now1=0, now2=0, mlp5=0, w2pol=None, cst=256, n1=0, xge=0,
        b3=0, fdense=0, fthr=32, hdense=0, wolate=0, nob2=0, w2late=0, wothr=1, w2thr=1, finthr=4, touch=0, spec=0, fcomb=0, fintrig=0, w2pre=0, aptr=0, smerge=0, eprio=0, warm=0, warmq=1, xmap=0, xnb=3, xcont=0, xlo=0, perm=None, xs=0, xsm=7):
    L = []
    A = L.append

    def C(s):
        L.append("; " + s)

    if not pool:
        NLOC = 128
    POOL = 8 * (128 - NLOC)
    assert LOOK >= KQ * CH or not pool or satom
    PER = 8
    kp = (" " + kpol) if kpol else ""
    wp = (" " + wpol) if wpol else ""
    w2p = wp if w2pol is None else ((" " + w2pol) if w2pol != "def" else "")
    NC = 5 if mlp5 else 8
    R1 = 640 // NC
    ZST = 2048
    CB = 512 if mlp5 else 384

    def srd(base, lo, hi, size):
        A(f"s_mov_b32 s{base}, s{lo}")
        A(f"s_mov_b32 s{base+1}, s{hi}")
        A(f"s_mov_b32 s{base+2}, {size}")
        A(f"s_mov_b32 s{base+3}, 0x20000")

    def vr(a, n):
        return f"v[{a}:{a+n-1}]"

    DPPM = "row_mask:0xf bank_mask:0xf"

    def rbf(dst, src):
        A(f"v_cvt_pk_bf16_f32 v{dst}, v{src}, v{src}")
        A(f"v_and_b32 v{dst}, 0xffff0000, v{dst}")

    def row_sum(v, steps=(8, 4, 2, 1), op="v_add_f32"):
        for s in steps:
            A(f"{op}_dpp v{v}, v{v}, v{v} row_ror:{s} {DPPM}")

    def oct_reduce(regs, op="v_add_f32"):
        for mod in ("quad_perm:[1,0,3,2]", "quad_perm:[2,3,0,1]", "row_half_mirror"):
            for v in regs:
                A(f"{op}_dpp v{v}, v{v}, v{v} {mod} {DPPM}")

    def swap_add(v, t, which, op="v_add_f32"):
        A(f"v_mov_b32 v{t}, v{v}")
        A(f"v_permlane{which}_swap_b32 v{v}, v{t}")
        A(f"{op} v{v}, v{v}, v{t}")

    def swap_add_n(regs, tmps, which):
        for v, t in zip(regs, tmps):
            A(f"v_mov_b32 v{t}, v{v}")
        for v, t in zip(regs, tmps):
            A(f"v_permlane{which}_swap_b32 v{v}, v{t}")
        for v, t in zip(regs, tmps):
            A(f"v_add_f32 v{v}, v{v}, v{t}")

    def pair_sum(regs, tmps):
        for v, t in zip(regs, tmps):
            A(f"v_mov_b32 v{t}, v{v}")
        for v, t in zip(regs, tmps):
            A(f"v_permlane32_swap_b32 v{v}, v{t}")
        for v, t in zip(regs, tmps):
            A(f"v_add_f32_dpp v{v}, v{t}, v{v} row_ror:8 {DPPM}")

    def wave_sum(v, t):
        row_sum(v)
        swap_add(v, t, 16)
        swap_add(v, t, 32)

    def stamp(slot):
        if diag:
            A(f"s_memrealtime s[{84+2*slot}:{85+2*slot}]")

    def flush_stamps(sv=248):
        if not diag:
            return
        A("s_mov_b64 exec, -1")
        A("s_waitcnt vmcnt(0) lgkmcnt(0)")
        A(f"s_lshl_b32 s82, s2, 9")
        A(f"s_lshl_b32 s83, s3, 6")
        A("s_add_u32 s82, s82, s83")
        A(f"s_add_u32 s82, s82, {TS_OFF}")
        A(f"v_mov_b32 v{sv+4}, 0")
        A("s_mov_b64 exec, 1")
        for k in range(4):
            for r in range(4):
                A(f"v_mov_b32 v{sv+r}, s{84+4*k+r}")
            A(f"buffer_store_dwordx4 v[{sv}:{sv+3}], v{sv+4}, s[36:39], s82 offen offset:{16*k}")
            A("s_nop 1")
        A("s_mov_b64 exec, -1")

    def endp():
        flush_stamps()
        A("s_endpgm")

    def ln(xin, tmp):
        t0, t1, t2, t3, t4, t5 = [tmp + i for i in range(6)]
        A(f"v_add_f32 v{t0}, v{xin}, v{xin+1}")
        for i in range(2, 10):
            A(f"v_add_f32 v{t0}, v{t0}, v{xin+i}")
        wave_sum(t0, t1)
        A(f"v_mul_f32 v{t0}, {fl(1.0/640.0)}, v{t0}")
        A(f"v_sub_f32 v{t2}, v{xin}, v{t0}")
        A(f"v_mul_f32 v{t3}, v{t2}, v{t2}")
        for i in range(1, 10):
            A(f"v_sub_f32 v{t2}, v{xin+i}, v{t0}")
            A(f"v_fmac_f32 v{t3}, v{t2}, v{t2}")
        wave_sum(t3, t1)
        A(f"v_mul_f32 v{t3}, {fl(1.0/640.0)}, v{t3}")
        rbf(t3, t3)
        A(f"v_add_f32 v{t3}, {fl(1e-5)}, v{t3}")
        rbf(t3, t3)
        A(f"v_sqrt_f32 v{t3}, v{t3}")
        rbf(t0, t0)
        rbf(t3, t3)
        A(f"v_rcp_f32 v{t3}, v{t3}")
        for i in range(0, 10, 2):
            A(f"v_sub_f32 v{t1}, v{xin+i}, v{t0}")
            A(f"v_sub_f32 v{t2}, v{xin+i+1}, v{t0}")
            A(f"v_cvt_pk_bf16_f32 v{t4}, v{t1}, v{t2}")
            A(f"v_lshlrev_b32 v{t1}, 16, v{t4}")
            A(f"v_and_b32 v{t2}, 0xffff0000, v{t4}")
            A(f"v_mul_f32 v{t1}, v{t1}, v{t3}")
            A(f"v_mul_f32 v{t2}, v{t2}, v{t3}")
            A(f"v_cvt_pk_bf16_f32 v{xin+i}, v{t1}, v{t1}")
            A(f"v_cvt_pk_bf16_f32 v{xin+i+1}, v{t2}, v{t2}")

    def unpack_pairs(src, dst, n):
        for k in range(n):
            A(f"v_lshlrev_b32 v{dst+2*k}, 16, v{src+k}")
            A(f"v_and_b32 v{dst+2*k+1}, 0xffff0000, v{src+k}")

    def sel_masks(m, lane, t0, t1, eight_rows):
        A(f"v_and_b32 v{t0}, 1, v{lane}")
        A(f"v_cmp_eq_u32 vcc, 1, v{t0}")
        A(f"v_mov_b32 v{t0}, 0x0000ffff")
        A(f"v_mov_b32 v{t1}, 0xffff0000")
        A(f"v_cndmask_b32 v{t0}, v{t0}, v{t1}, vcc")
        A(f"v_and_b32 v{t1}, {15 if eight_rows else 7}, v{lane}")
        A(f"v_lshrrev_b32 v{t1}, 1, v{t1}")
        for r in range(4):
            A(f"v_cmp_eq_u32 vcc, {r}, v{t1}")
            A(f"v_cndmask_b32 v{m+r}, 0, v{t0}, vcc")

    def sel_gemv(n, vals, W, aset, masks, D, D2, tmp, waits=None):
        for t in range(n):
            if waits and t in waits:
                A(f"s_waitcnt vmcnt({waits[t]})")
            a = aset + 4 * (t & 1)
            d = D if (t & 1) == 0 else D2
            for r in range(4):
                A(f"v_and_b32 v{a+r}, v{vals+t}, v{masks+r}")
            c = "0" if t < 2 else vr(d, 4)
            A(f"v_mfma_f32_16x16x32_bf16 {vr(d,4)}, {vr(a,4)}, {vr(W+4*t,4)}, {c}")
        for r in range(4):
            A(f"v_add_f32 v{D+r}, v{D+r}, v{D2+r}")

    def tagcheck(acc, g, first):
        if first:
            A(f"v_xor_b32 v{acc}, s30, v{g+1}")
        else:
            A(f"v_bitop3_b32 v{acc}, v{acc}, v{g+1}, s30 bitop3:0xf6")
        A(f"v_bitop3_b32 v{acc}, v{acc}, v{g+3}, s31 bitop3:0xf6")

    def pack_tags(g, vff):
        for r in range(4):
            A(f"v_bfi_b32 v{g+r}, v{vff}, s{72+r}, v{g+r}")

    def strip_tags(acc, g, first):
        for r in range(4):
            A(f"v_xor_b32 v{g+r}, s{72+r}, v{g+r}")
        if first:
            A(f"v_or3_b32 v{acc}, v{g}, v{g+1}, v{g+2}")
            A(f"v_or_b32 v{acc}, v{acc}, v{g+3}")
        else:
            A(f"v_or3_b32 v{acc}, v{acc}, v{g}, v{g+1}")
            A(f"v_or3_b32 v{acc}, v{acc}, v{g+2}, v{g+3}")

    def poll_branch(label):
        A(f"s_cbranch_vccz {label}_OK")
        A("s_add_u32 s80, s80, 1")
        A(f"s_cmp_lt_u32 s80, {POLL_MAX}")
        A(f"s_cbranch_scc1 {label}")
        A(f"{label}_OK:")

    def read_flag(vt, sdst, off=0):
        A(f"v_mov_b32 v{vt}, 0")
        A(f"ds_read_b32 v{vt}, v{vt} offset:{L_FLAG+off}")
        A("s_waitcnt lgkmcnt(0)")
        A(f"v_readfirstlane_b32 s{sdst}, v{vt}")

    def wait_flag(label, vt=2, sdst=81, off=0):
        A("s_mov_b32 s82, 0")
        A(f"{label}:")
        read_flag(vt, sdst, off)
        A(f"s_cmp_lg_u32 s{sdst}, 0")
        A(f"s_cbranch_scc1 {label}_OK")
        A("s_add_u32 s82, s82, 1")
        A(f"s_cmp_lt_u32 s82, {POLL_MAX*16}")
        A(f"s_cbranch_scc1 {label}")
        A(f"{label}_OK:")

    def wait_cnt(label, thr, vt=2, sdst=81):
        A("s_mov_b32 s82, 0")
        A(f"{label}:")
        read_flag(vt, sdst, 16)
        A(f"s_cmp_ge_u32 s{sdst}, {thr}")
        A(f"s_cbranch_scc1 {label}_OK")
        A("s_add_u32 s82, s82, 1")
        A(f"s_cmp_lt_u32 s82, {POLL_MAX*16}")
        A(f"s_cbranch_scc1 {label}")
        A(f"{label}_OK:")

    def toggle_oob(regs):
        for r in regs:
            A(f"s_xor_b32 s{r}, s{r}, {OOB}")

    def skip_if_dry(label):
        A("s_cmp_lg_u32 s79, 0")
        A(f"s_cbranch_scc1 {label}")

    def tag_bytes():
        A("s_and_b32 s72, s30, 0xff")
        A("s_bfe_u32 s73, s30, 0x80008")
        A("s_bfe_u32 s74, s30, 0x80010")
        A("s_lshr_b32 s75, s30, 24")

    def merge_publish(sop=60, sml=62):
        P = 16
        GO = 80
        VFF2 = 15
        if spec and nob2:
            A("s_mov_b32 s82, 0")
            A("L_MG_SPEC:")
            A(f"ds_read_b32 v3, v10 offset:{L_FLAG+16}")
        for w in range(4):
            A(f"ds_read_b64 {vr(P+16+2*w,2)}, v10 offset:{L_PART+576*w+512}")
        for w in range(4):
            A(f"ds_read_b128 {vr(P+4*w,4)}, v2 offset:{L_PART+576*w}")
        if spec and nob2:
            A("s_waitcnt lgkmcnt(0)")
            A("v_readfirstlane_b32 s81, v3")
            A("s_cmp_ge_u32 s81, 4")
            A("s_cbranch_scc1 L_MG_SPEC_OK")
            A("s_add_u32 s82, s82, 1")
            A(f"s_cmp_lt_u32 s82, {POLL_MAX*16}")
            A("s_cbranch_scc1 L_MG_SPEC")
            A("L_MG_SPEC_OK:")
            stamp(0)
        else:
            A("s_waitcnt lgkmcnt(4)")
        A(f"v_max3_f32 v8, v{P+16}, v{P+18}, v{P+20}")
        A(f"v_max_f32 v8, v8, v{P+22}")
        for w in range(4):
            A(f"v_sub_f32 v{P+16+2*w}, v{P+16+2*w}, v8")
        for w in range(4):
            A(f"v_mul_f32 v{P+16+2*w}, {fl(LOG2E)}, v{P+16+2*w}")
        for w in range(4):
            A(f"v_exp_f32 v{P+16+2*w}, v{P+16+2*w}")
        A(f"v_mov_b32 v{GO+4}, v8")
        A(f"v_mov_b32 v{GO+5}, s30")
        A(f"v_mov_b32 v{GO+7}, s31")
        A(f"v_mul_f32 v{GO+6}, v{P+16}, v{P+17}")
        for w in range(1, 4):
            A(f"v_fmac_f32 v{GO+6}, v{P+16+2*w}, v{P+17+2*w}")
        A("s_waitcnt lgkmcnt(0)")
        for r in range(4):
            A(f"v_mul_f32 v{GO+r}, v{P+16}, v{P+r}")
        for w in range(1, 4):
            for r in range(4):
                A(f"v_fmac_f32 v{GO+r}, v{P+16+2*w}, v{P+4*w+r}")
        pack_tags(GO, VFF2)
        A("s_mov_b32 exec_hi, 0")
        A(f"buffer_store_dwordx4 {vr(GO,4)}, v2, s[36:39], s{sop} offen sc1")
        A("s_mov_b64 exec, 1")
        A(f"buffer_store_dwordx4 {vr(GO+4,4)}, v10, s[36:39], s{sml} offen sc1")
        A("s_mov_b64 exec, -1")

    def get_tags(compact=True):
        A("s_waitcnt lgkmcnt(0)")
        A(f"s_add_u32 s30, s30, {TAG0}")
        A(f"s_add_u32 s31, s31, {TAG1}")
        if compact:
            A("s_and_b32 s72, s30, 0xff")
            A("s_bfe_u32 s73, s30, 0x80008")
            A("s_bfe_u32 s74, s30, 0x80010")
            A("s_lshr_b32 s75, s30, 24")

    if header:
        hdr = open("parallel_sum__gqa_block_cached__mixer_channel_mlp__decode.s.ref").read().split("\n")
        for ln_ in hdr:
            if ln_.startswith("; @launch") or ln_.startswith(".amdgcn_target"):
                break
            if ln_.startswith("; Override") or ln_.startswith("; grid="):
                continue
            L.append(ln_)
    LDS_SIZE = 10240 if pool else 8192
    L.append(f"; @launch grid=(256,1,1) block=(512,1,1) lds={LDS_SIZE}")
    L.append('.amdgcn_target "amdgcn-amd-amdhsa--gfx950"')
    L.append(".text")
    L.append(f".globl {NAME}")
    L.append(".p2align 8")
    L.append(f".type {NAME},@function")
    L.append(f"{NAME}:")

    C("256 workgroups x 8 waves. waves 0..3 helpers, waves 4..7 stream K/V")
    if diag:
        A("s_memrealtime s[96:97]")
        for r in list(range(84, 96)) + [98, 99]:
            A(f"s_mov_b32 s{r}, 0x5a5a5a5a")
    A("s_cmp_ge_u32 s2, 256")
    A("s_cbranch_scc1 L_END")
    if perm is not None:
        pm = [int(c) for c in str(perm)[1:]]
        assert sorted(pm) == list(range(8))
        first = True
        i = 0
        while i < 8:
            n = 1
            while i + n < 8 and pm[i + n] == pm[i] + n:
                n += 1
            dst = "s32" if first else "s33"
            A(f"s_bfe_u32 {dst}, s2, {hex((n << 16) | pm[i])}")
            if i:
                A(f"s_lshl_b32 {dst}, {dst}, {i}")
            if not first:
                A("s_or_b32 s32, s32, s33")
            first = False
            i += n
        A("s_mov_b32 s2, s32")
    elif xnb != 3:
        nb = xnb
        if xlo:
            if nb:
                A(f"s_and_b32 s33, s2, {(1<<nb)-1}")
            A(f"s_bfe_u32 s32, s2, {hex(((3-nb)<<16)|nb)}")
        else:
            A(f"s_and_b32 s32, s2, {(1<<(3-nb))-1}")
            if nb:
                A(f"s_bfe_u32 s33, s2, {hex((nb<<16)|(3-nb))}")
        A(f"s_bfe_u32 s34, s2, {hex(((2+nb)<<16)|3)}")
        A(f"s_lshl_b32 s34, s34, {3-nb}")
        A("s_or_b32 s32, s32, s34")
        A(f"s_lshr_b32 s34, s2, {5+nb}")
        if nb == 0:
            A("s_mov_b32 s33, s34")
        elif xcont:
            A(f"s_lshl_b32 s33, s33, {3-nb}")
            A("s_or_b32 s33, s33, s34")
        else:
            A(f"s_lshl_b32 s34, s34, {nb}")
            A("s_or_b32 s33, s33, s34")
        A("s_lshl_b32 s2, s32, 3")
        A("s_or_b32 s2, s2, s33")
    elif xmap == 1:
        A("s_and_b32 s32, s2, 31")
        A("s_lshr_b32 s33, s2, 5")
        A("s_lshl_b32 s2, s32, 3")
        A("s_or_b32 s2, s2, s33")
    elif xmap == 2:
        A("s_and_b32 s32, s2, 3")
        A("s_bfe_u32 s33, s2, 0x30003")
        A("s_lshl_b32 s33, s33, 2")
        A("s_or_b32 s32, s32, s33")
        A("s_lshr_b32 s33, s2, 6")
        A("s_lshl_b32 s33, s33, 1")
        A("s_bfe_u32 s2, s2, 0x10002")
        A("s_or_b32 s33, s33, s2")
        A("s_lshl_b32 s2, s32, 3")
        A("s_or_b32 s2, s2, s33")
    if xs:
        A(f"s_lshr_b32 s33, s2, {2+xs}")
        A(f"s_and_b32 s33, s33, {xsm}")
        A("s_xor_b32 s2, s2, s33")
    A("s_load_dwordx16 s[4:19], s[0:1], 0")
    A("s_load_dwordx8 s[20:27], s[0:1], 64")
    A("s_load_dwordx2 s[28:29], s[0:1], 96")
    A("v_lshrrev_b32 v1, 6, v0")
    A("v_and_b32 v0, 63, v0")
    A("v_readfirstlane_b32 s3, v1")
    A("s_lshr_b32 s32, s2, 3")
    A("s_and_b32 s33, s2, 7")
    A("v_lshrrev_b32 v4, 4, v0")
    A("v_and_b32 v5, 15, v0")
    A("s_waitcnt lgkmcnt(0)")
    srd(36, 28, 29, WS_SIZE)
    if smerge:
        A(f"s_load_dwordx2 s[30:31], s[28:29], {R_OFF}")
    A("s_cmp_ge_u32 s3, 4")
    A("s_cbranch_scc1 L_STREAM")
    if not smerge:
        A(f"s_load_dwordx2 s[30:31], s[28:29], {R_OFF}")
    A("s_mov_b32 s80, 0")
    A("s_cmp_eq_u32 s3, 1")
    A("s_cbranch_scc1 L_H1")
    A("s_cmp_eq_u32 s3, 2")
    A("s_cbranch_scc1 L_H2")
    A("s_cmp_eq_u32 s3, 3")
    A("s_cbranch_scc1 L_FIN")

    C("---- H0 ----")
    stamp(4)
    X = 10
    XF = 16
    T = 26
    MK = 32
    AS = 36
    D = 44
    D2 = 48
    VAL = 52
    G = 72
    W = 100
    srd(40, 4, 5, 1280)
    srd(44, 10, 11, 640 * 8192)
    A("v_lshlrev_b32 v2, 2, v0")
    for k in range(5):
        A(f"buffer_load_dword v{X+k}, v2, s[40:43], 0 offen offset:{256*k}")
    A("v_lshrrev_b32 v6, 3, v0")
    A("v_and_b32 v7, 7, v0")
    A(f"v_mul_u32_u24 v3, {20*8192}, v6")
    A("v_lshl_add_u32 v3, v7, 4, v3")
    if noq:
        A("s_barrier")
        A("v_mov_b32 v7, 0")
        A("v_mov_b32 v8, 1")
        A(f"ds_write_b32 v7, v8 offset:{L_FLAG}")
        endp()
    if qprio:
        A(f"s_setprio {qprio}")
    A("s_lshr_b32 s58, s33, 1")
    A("s_and_b32 s59, s33, 1")
    A(f"s_mul_i32 s56, s58, {160*8192}")
    A("s_lshl_b32 s57, s32, 8")
    A("s_add_u32 s56, s56, s57")
    A("s_lshl_b32 s57, s59, 7")
    A("s_add_u32 s56, s56, s57")
    for t in range(20):
        A(f"buffer_load_dwordx4 {vr(W+4*t,4)}, v3, s[44:47], s56 offen{wp}")
        if t < 19:
            A("s_add_u32 s56, s56, 8192")
    XW = 0
    if pool:
        XW = 1
        A(f"s_mul_i32 s70, s32, {cst}")
        A(f"s_add_u32 s70, s70, {CNT_OFF}")
        A("s_cmp_eq_u32 s33, 0")
        A(f"s_cselect_b32 s57, s70, {OOB}")
        A("v_mov_b32 v8, 0")
        A("s_mov_b64 exec, 1")
        A("buffer_store_dword v8, v8, s[36:39], s57 offen sc1")
        A("s_mov_b64 exec, -1")
    stamp(5)
    A("s_barrier")
    stamp(0)
    sel_masks(MK, 0, T, T + 1, False)
    A("v_mul_u32_u24 v7, 80, v6")
    A("v_lshlrev_b32 v6, 3, v0")
    A(f"s_mul_i32 s57, s58, 640")
    A("v_add_u32 v7, s57, v7")
    A(f"s_waitcnt vmcnt({20+XW})")
    unpack_pairs(X, XF, 5)
    ln(XF, T)
    for k in range(5):
        A(f"ds_write_b64 v6, {vr(XF+2*k,2)} offset:{L_XN2+512*k}")
    A("s_waitcnt lgkmcnt(0)")
    for i in range(5):
        A(f"ds_read_b128 {vr(VAL+4*i,4)}, v7 offset:{L_XN2+16*i}")
    get_tags(False)
    stamp(1)
    sel_gemv(20, VAL, W, AS, MK, D, D2, T, waits={0: 15+XW, 5: 10+XW, 10: 5+XW, 15: XW})
    pair_sum([D, D + 1, D + 2, D + 3], [T, T + 1, T + 2, T + 3])
    A(f"v_mov_b32_dpp v{D}, v{D+2} row_ror:8 row_mask:0xf bank_mask:0xc")
    A(f"v_mov_b32_dpp v{D+1}, v{D+3} row_ror:8 row_mask:0xf bank_mask:0xc")
    A("v_and_b32 v8, 7, v5")
    A("v_lshlrev_b32 v8, 6, v8")
    A("v_lshl_add_u32 v8, v4, 5, v8")
    A("v_lshrrev_b32 v9, 3, v5")
    A("v_lshl_add_u32 v8, v9, 4, v8")
    A("s_lshl_b32 s57, s32, 12")
    A("s_lshl_b32 s58, s58, 10")
    A("s_add_u32 s57, s57, s58")
    A("s_lshl_b32 s59, s59, 9")
    A("s_add_u32 s57, s57, s59")
    A(f"s_add_u32 s57, s57, {QP_OFF}")
    A(f"v_mov_b32 v{G}, v{D}")
    A(f"v_mov_b32 v{G+1}, s30")
    A(f"v_mov_b32 v{G+2}, v{D+1}")
    A(f"v_mov_b32 v{G+3}, s31")
    if pool:
        A("s_waitcnt vmcnt(0)")
    A("s_mov_b32 exec_hi, 0")
    A(f"buffer_store_dwordx4 {vr(G,4)}, v8, s[36:39], s57 offen sc1")
    A("s_mov_b64 exec, -1")
    stamp(2)
    A("v_lshlrev_b32 v9, 4, v0")
    A("s_lshl_b32 s58, s32, 12")
    A(f"s_add_u32 s58, s58, {QP_OFF}")
    if pubwait & 1:
        A("s_waitcnt vmcnt(0)")
    else:
        A("s_nop 1")
    A("L_H0_POLL:")
    for k in range(4):
        A(f"buffer_load_dwordx4 {vr(G+4*k,4)}, v9, s[36:39], s58 offen offset:{1024*k} sc1")
    A("s_waitcnt vmcnt(0)")
    for k in range(4):
        tagcheck(T, G + 4 * k, k == 0)
    A(f"v_cmp_ne_u32 vcc, 0, v{T}")
    poll_branch("L_H0_POLL")
    A(f"v_add_f32 v{T}, v{G}, v{G+4}")
    A(f"v_add_f32 v{T+1}, v{G+2}, v{G+6}")
    for k in range(2, 4):
        A(f"v_add_f32 v{T}, v{T}, v{G+4*k}")
        A(f"v_add_f32 v{T+1}, v{T+1}, v{G+4*k+2}")
    A(f"v_cvt_pk_bf16_f32 v{T}, v{T}, v{T+1}")
    A("v_lshlrev_b32 v6, 2, v0")
    A(f"ds_write_b32 v6, v{T} offset:{L_Q}")
    A("v_mov_b32 v7, 0")
    A("v_mov_b32 v8, 1")
    A("s_waitcnt lgkmcnt(0)")
    A(f"ds_write_b32 v7, v8 offset:{L_FLAG}")
    stamp(3)
    if pool:
        C("---- H0 continues as the manager of shared tiles ----")
        if mprio:
            A(f"s_setprio {mprio}")
        A("s_mov_b32 s60, 0")
        A("s_mov_b32 s61, 0")
        A("s_mov_b32 s82, 0")
        A("v_lshlrev_b32 v6, 2, v0")
        A(f"v_mov_b32 v9, {OOB}")
        A(f"s_mov_b32 s63, {POOL}")

        def m_issue(i):
            lab = f"L_M_SPIN_{i}"
            A(f"{lab}:")
            A(f"ds_read_b32 v2, v7 offset:{L_FLAG+8}")
            A("s_waitcnt lgkmcnt(0)")
            A("v_readfirstlane_b32 s62, v2")
            A(f"s_add_u32 s62, s62, {LOOK}")
            A(f"s_sub_u32 s62, s62, s60")
            A(f"s_cmp_ge_i32 s62, {NLOC+CH}")
            A(f"s_cbranch_scc1 {lab}_OK")
            A("s_add_u32 s82, s82, 1")
            A(f"s_cmp_lt_u32 s82, {POLL_MAX*16}")
            A(f"s_cbranch_scc1 {lab}")
            A(f"{lab}_OK:")

        def m_atomic(slot):
            A(f"v_mov_b32 v{16+slot}, {CH}")
            A("s_mov_b64 exec, 1")
            if pfake != 1:
                A(f"buffer_atomic_add v{16+slot}, v7, s[36:39], s70 offen sc0 sc1")
            A("s_mov_b64 exec, -1")
            A(f"s_add_u32 s60, s60, {CH}")

        lgch = CH.bit_length() - 1
        assert 1 << lgch == CH
        NP_ = 128 - NLOC

        def m_process(slot):
            if pfake:
                A("s_mov_b32 s62, s61")
                A("v_add_u32 v3, s62, v0")
                A(f"s_mul_i32 s64, s33, {128*4096}")
                A(f"s_add_u32 s64, s64, {NLOC*4096}")
                A("v_lshlrev_b32 v8, 12, v3")
                A("v_add_u32 v8, s64, v8")
                A(f"s_mov_b32 s63, {NP_}")
            elif pmap:
                A(f"v_readfirstlane_b32 s62, v{16+slot}")
                A("v_add_u32 v3, s62, v0")
                A(f"v_lshrrev_b32 v8, {lgch}, v3")
                A("v_and_b32 v10, 7, v8")
                A("v_lshrrev_b32 v8, 3, v8")
                A(f"v_lshlrev_b32 v8, {lgch}, v8")
                A(f"v_and_b32 v11, {CH-1}, v3")
                A("v_add_u32 v8, v8, v11")
                A("v_lshl_add_u32 v8, v10, 7, v8")
                A(f"v_add_u32 v8, {NLOC}, v8")
                A("v_lshlrev_b32 v8, 12, v8")
            else:
                A(f"v_readfirstlane_b32 s62, v{16+slot}")
                A("v_add_u32 v3, s62, v0")
                A("v_lshlrev_b32 v8, 12, v3")
                A(f"v_add_u32 v8, {8*NLOC*4096}, v8")
            A("v_cmp_gt_u32 vcc, s63, v3")
            A("v_cndmask_b32 v8, v9, v8, vcc")
            A(f"s_add_u32 s61, s61, {CH}")
            A(f"s_add_u32 s62, s62, {CH}")
            A(f"s_cmp_gt_u32 s62, {NP_ if pfake else POOL}")
            A(f"s_cselect_b64 exec, -1, {(1<<CH)-1}")
            A(f"ds_write_b32 v6, v8 offset:{L_TAB}")
            A("s_mov_b64 exec, -1")
            A(f"v_add_u32 v6, {4*CH}, v6")
            A("s_cbranch_scc1 L_M_DONE_X")

        if satom:
            A("s_add_u32 s66, s28, s70")
            A("s_addc_u32 s67, s29, 0")
            A("L_M_LOOP:")
            m_issue("S")
            if diag:
                A("s_cmp_lg_u32 s60, 0")
                A("s_cbranch_scc1 L_M_NOST")
                stamp(5)
                A("L_M_NOST:")
            A(f"s_sub_u32 s65, s62, {NLOC}")
            A("s_min_u32 s65, s65, 32")
            if n1:
                A("s_cmp_eq_u32 s60, 0")
                A(f"s_cselect_b32 s64, {n1}, 0")
                A("s_max_u32 s65, s65, s64")
            A("s_mov_b32 s64, s65")
            if pfake != 1:
                A("s_atomic_add s64, s[66:67], 0x0 glc")
            A("s_add_u32 s60, s60, s65")
            A("s_bfm_b64 s[68:69], s65, 0")
            A("s_waitcnt lgkmcnt(0)")
            if pfake:
                A("s_mov_b32 s64, s61")
                A("v_add_u32 v3, s64, v0")
                A(f"s_mul_i32 s62, s33, {128*4096}")
                A(f"s_add_u32 s62, s62, {NLOC*4096}")
                A("v_lshlrev_b32 v8, 12, v3")
                A("v_add_u32 v8, s62, v8")
                A(f"s_mov_b32 s63, {NP_}")
            elif pmap:
                A("v_add_u32 v3, s64, v0")
                A("v_and_b32 v10, 7, v3")
                A("v_lshrrev_b32 v8, 3, v3")
                A("v_lshl_add_u32 v8, v10, 7, v8")
                A(f"v_add_u32 v8, {NLOC}, v8")
                A("v_lshlrev_b32 v8, 12, v8")
            else:
                A("v_add_u32 v3, s64, v0")
                A("v_lshlrev_b32 v8, 12, v3")
                A(f"v_add_u32 v8, {8*NLOC*4096}, v8")
            A("v_cmp_gt_u32 vcc, s63, v3")
            A("v_cndmask_b32 v8, v9, v8, vcc")
            A("s_add_u32 s61, s61, s65")
            A("s_add_u32 s64, s64, s65")
            A(f"s_cmp_{'ge' if xge else 'gt'}_u32 s64, {NP_ if pfake else POOL}")
            A("s_cselect_b64 exec, -1, s[68:69]")
            A(f"ds_write_b32 v6, v8 offset:{L_TAB}")
            A("s_mov_b64 exec, -1")
            A("s_cbranch_scc1 L_M_DONE_X")
            A("s_lshl_b32 s65, s65, 2")
            A("v_add_u32 v6, s65, v6")
            A("s_branch L_M_LOOP")
        else:
            for i in range(KQ - 1):
                m_issue(f"P{i}")
                if i == 0:
                    stamp(5)
                m_atomic(i)
            A("L_M_LOOP:")
            for i in range(KQ):
                m_issue(i)
                m_atomic((KQ - 1 + i) % KQ)
                A(f"s_waitcnt vmcnt({KQ-1})")
                m_process(i % KQ)
            A("s_branch L_M_LOOP")
        A("L_M_DONE_X:")
        if wolate == 1:
            A("v_mov_b32 v8, 1")
            A(f"ds_write_b32 v7, v8 offset:{L_FLAG+16}")
        A("s_waitcnt vmcnt(0) lgkmcnt(0)")
        stamp(7)
        if diag:
            A("s_lshl_b32 s62, s2, 2")
            A("v_mov_b32 v2, s62")
            A("v_mov_b32 v3, s61")
            A("s_mov_b64 exec, 1")
            A("global_store_dword v2, v3, s[26:27]")
            A("s_mov_b64 exec, -1")
    if nob2 and not smerge:
        C("---- H0 finally merges the four streamer partials ----")
        tag_bytes()
        A("v_and_b32 v2, 31, v0")
        A("v_lshlrev_b32 v2, 4, v2")
        A("v_mov_b32 v10, 0")
        A("v_mov_b32 v15, 0xff")
        A("s_lshl_b32 s60, s2, 9")
        A(f"s_add_u32 s60, s60, {OP_OFF}")
        A("s_lshl_b32 s61, s32, 7")
        A(f"s_add_u32 s61, s61, {ML_OFF}")
        A("s_lshl_b32 s62, s33, 4")
        A("s_add_u32 s62, s62, s61")
        if warm & 4:
            assert not spec
            toggle_oob([60, 62])
            A("s_mov_b32 s79, 1")
            A("L_H0_RUN:")
            skip_if_dry("L_H0_CW_OK")
        if spec:
            wait_cnt("L_H0_CW", spec, vt=3)
        else:
            wait_cnt("L_H0_CW", 4, vt=3)
            stamp(0)
        merge_publish()
        stamp(1)
        if warm & 4:
            A("s_cmp_eq_u32 s79, 0")
            A("s_cbranch_scc1 L_H0_FINI")
            toggle_oob([60, 62])
            A("s_mov_b32 s79, 0")
            A("s_branch L_H0_RUN")
            A("L_H0_FINI:")
    elif smerge and (warm & 4):
        C("---- H0 rehearses the merge code of the streamers (nothing is stored) ----")
        A("v_and_b32 v2, 31, v0")
        A("v_lshlrev_b32 v2, 4, v2")
        A("v_mov_b32 v10, 0")
        A("v_mov_b32 v15, 0xff")
        tag_bytes()
        A(f"s_mov_b32 s66, {OOB}")
        A(f"s_mov_b32 s67, {OOB}")
        A("s_branch L_S_MERGE")
    endp()

    C("---- H1 ----")
    A("L_H1:")
    if hprio:
        A(f"s_setprio {hprio}")
    A("v_mov_b32 v2, 0")
    A(f"ds_write_b32 v2, v2 offset:{L_FLAG}")
    A(f"v_mov_b32 v3, {4*NP}")
    A(f"ds_write_b32 v2, v3 offset:{L_FLAG+8}")
    if wolate or nob2:
        A(f"ds_write_b32 v2, v2 offset:{L_FLAG+16}")
    if w2late == 2:
        A(f"ds_write_b32 v2, v2 offset:{L_FLAG+24}")
    if fintrig:
        A(f"ds_write_b32 v2, v2 offset:{L_FLAG+32}")
    if pool:
        A("v_lshlrev_b32 v2, 4, v0")
        for r in range(4):
            A(f"v_mov_b32 v{8+r}, -1")
        for k in range(2):
            A(f"ds_write_b128 v2, v[8:11] offset:{L_TAB+1024*k}")
    A("s_waitcnt lgkmcnt(0)")
    A("s_barrier")
    if noh or h1off:
        endp()
    A("s_lshr_b32 s57, s2, 6")
    A("s_and_b32 s35, s32, 7")
    if mlp5:
        A("s_mul_i32 s57, s2, 135")
        A("s_add_u32 s58, s57, 135")
        A("s_lshr_b32 s57, s57, 8")
        A("s_lshr_b32 s58, s58, 8")
        A("s_cmp_eq_u32 s57, s58")
        A("s_cbranch_scc1 L_H1_EXIT")
        A("s_mul_i32 s34, s57, 52429")
        A("s_lshr_b32 s34, s34, 18")
        A("s_mul_i32 s58, s34, 5")
        A("s_sub_u32 s35, s57, s58")
    elif zmap2:
        A("s_lshl_b32 s34, s33, 2")
        A("s_add_u32 s34, s34, s57")
        A("s_cmp_lt_u32 s33, 3")
        A("s_cbranch_scc1 L_H1_MLP")
        A("s_sub_u32 s58, s57, s33")
        A("s_add_u32 s58, s58, 3")
        A("s_and_b32 s58, s58, 3")
        A("s_mul_i32 s34, s33, 3")
        A("s_add_u32 s34, s34, s58")
        A("s_add_u32 s34, s34, 2")
        A("s_cmp_eq_u32 s58, 0")
        A("s_cbranch_scc1 L_H1_EXIT")
    else:
        A("s_mul_i32 s34, s33, 3")
        A("s_add_u32 s34, s34, s57")
        A("s_cmp_lt_u32 s57, 3")
        A("s_cbranch_scc1 L_H1_MLP")
        A("s_add_u32 s34, s33, 24")
        A("s_cmp_ge_u32 s33, 3")
        A("s_cbranch_scc1 L_H1_EXIT")
    A("L_H1_MLP:")
    get_tags()
    wait_flag("L_H1_QW")
    stamp(0)
    N1 = R1 // 8
    W1 = 100
    W2 = W1 + 4 * N1
    B1 = 14
    VFF = 9
    srd(44, 16, 17, 640 * 3456)
    srd(48, 20, 21, 1728 * 1280)
    srd(52, 18, 19, 3456)
    A("v_lshlrev_b32 v6, 3, v0")
    for k in range(5):
        A(f"ds_read_b64 {vr(XF+2*k,2)}, v6 offset:{L_XN2+512*k}")
    A("v_bfe_u32 v10, v0, 3, 1")
    A("v_and_b32 v7, 7, v0")
    A(f"v_mul_u32_u24 v8, {2*N1}, v4")
    A(f"v_mad_u32_u24 v8, v10, {N1}, v8")
    A(f"v_mul_u32_u24 v3, 3456, v8")
    A("v_lshl_add_u32 v3, v7, 4, v3")
    A(f"s_mul_i32 s56, s35, {R1*3456}")
    A("s_lshl_b32 s57, s34, 7")
    A("s_add_u32 s56, s56, s57")
    if now1:
        A(f"v_mov_b32 v3, {OOB}")
    for t in range(N1):
        A(f"buffer_load_dwordx4 {vr(W1+4*t,4)}, v3, s[44:47], s56 offen{wp}")
        if t < N1 - 1:
            A("s_add_u32 s56, s56, 3456")
    A("v_lshlrev_b32 v11, 3, v5")
    A(f"buffer_load_dwordx2 {vr(B1,2)}, v11, s[52:55], s57 offen")
    A(f"v_mul_u32_u24 v3, {16*1280}, v4")
    A("v_lshl_add_u32 v3, v5, 4, v3")
    A(f"v_mov_b32 v11, {OOB}")
    if not mlp5:
        A("v_cmp_gt_u32 vcc, 10, v5")
        A("v_cndmask_b32 v3, v11, v3, vcc")
    if now2:
        A("v_mov_b32 v3, v11")
    if touch & 2:
        A(f"v_mul_u32_u24 v98, {63*1280}, v0")
        A(f"s_mul_i32 s56, s34, {64*1280}")
        A("s_mov_b64 exec, 3")
        A("buffer_load_dword v99, v98, s[48:51], s56 offen")
        A("s_mov_b64 exec, -1")

    def w2_loads():
        A(f"s_mul_i32 s56, s34, {64*1280}")
        A(f"s_mul_i32 s57, s35, {1280//NC}")
        A("s_add_u32 s56, s56, s57")
        if warm & 8:
            A("s_or_b32 s56, s56, s79")
        for t in range(16):
            A(f"buffer_load_dwordx4 {vr(W2+4*t,4)}, v3, s[48:51], s56 offen{w2p}")
            if t < 15:
                A("s_add_u32 s56, s56, 1280")
    if not w2late:
        w2_loads()
    sel_masks(MK, 0, T, T + 1, False)
    A(f"s_mul_i32 s57, s35, {R1*4}")
    A("v_lshlrev_b32 v8, 2, v8")
    A("v_add_u32 v8, s57, v8")
    A(f"v_mov_b32 v{VFF}, 0xff")
    A("s_waitcnt lgkmcnt(0)")
    for i in range(10):
        A(f"v_and_b32 v{XF+i}, 0xffff0000, v{XF+i}")
    ln(XF, T)
    for k in range(5):
        A(f"ds_write_b64 v6, {vr(XF+2*k,2)} offset:{L_Y2+512*k}")
    A("s_waitcnt lgkmcnt(0)")
    if mlp5:
        for i in range(4):
            A(f"ds_read_b128 {vr(VAL+4*i,4)}, v8 offset:{L_Y2+16*i}")
    else:
        for i in range(5):
            A(f"ds_read_b64 {vr(VAL+2*i,2)}, v8 offset:{L_Y2+8*i}")
    A("s_waitcnt lgkmcnt(0)")
    stamp(1)
    if h1stop == 1:
        A("s_waitcnt vmcnt(0)")
        endp()
    A(f"s_waitcnt vmcnt({(2 if touch & 2 else 1) if w2late else 17})")
    stamp(2)
    sel_gemv(N1, VAL, W1, AS, MK, D, D2, T)
    pair_sum([D, D + 1, D + 2, D + 3], [T, T + 1, T + 2, T + 3])
    pack_tags(D, VFF)
    A("v_lshlrev_b32 v8, 5, v5")
    A("v_lshl_add_u32 v8, v4, 4, v8")
    A("s_lshl_b32 s57, s34, 3")
    A("s_add_u32 s57, s57, s35")
    A("s_lshl_b32 s57, s57, 8")
    A(f"s_add_u32 s57, s57, {ZP_OFF}")
    A("s_mov_b32 s60, 0x00ff00ff")
    A("s_mov_b32 s61, 0")
    A("s_mov_b64 exec, s[60:61]")
    A(f"buffer_store_dwordx4 {vr(D,4)}, v8, s[36:39], s57 offen sc1")
    A("s_mov_b64 exec, -1")
    stamp(3)
    if h1stop == 2:
        A("s_waitcnt vmcnt(0)")
        endp()
    A("v_lshlrev_b32 v10, 4, v0")
    A("s_lshl_b32 s58, s34, 11")
    A(f"s_add_u32 s58, s58, {ZP_OFF}")
    if mlp5:
        for r in range(4):
            A(f"v_mov_b32 v{G+4+r}, 0")
    if pubwait & 2:
        A("s_waitcnt vmcnt(0)")
    A("L_H1_POLL:")
    A(f"buffer_load_dwordx4 {vr(G,4)}, v10, s[36:39], s58 offen sc1")
    if mlp5:
        A("s_mov_b64 exec, 0xffff")
    A(f"buffer_load_dwordx4 {vr(G+4,4)}, v10, s[36:39], s58 offen offset:1024 sc1")
    A("s_waitcnt vmcnt(0)")
    if mlp5:
        A("s_mov_b64 exec, -1")
    strip_tags(T, G, True)
    if mlp5:
        A("s_mov_b64 exec, 0xffff")
    strip_tags(T, G + 4, False)
    if mlp5:
        A("s_mov_b64 exec, -1")
    A(f"v_and_b32 v{T}, 0xff, v{T}")
    A(f"v_cmp_ne_u32 vcc, 0, v{T}")
    poll_branch("L_H1_POLL")
    stamp(7)
    if h1stop == 3:
        endp()
    Z = G
    for r in range(4):
        A(f"v_add_f32 v{Z+r}, v{Z+r}, v{G+4+r}")
    swap_add_n([Z + r for r in range(4)], [T + r for r in range(4)], 16)
    swap_add_n([Z + r for r in range(4)], [T + r for r in range(4)], 32)
    c1 = -2.0 * 0.7978845608028654 * LOG2E
    c2 = c1 * 0.044715
    A(f"s_mov_b32 s62, {fl(c2)}")
    for e in range(4):
        z = Z + e
        rbf(z, z)
        if (e & 1) == 0:
            A(f"v_lshlrev_b32 v{T+2}, 16, v{B1+(e>>1)}")
        else:
            A(f"v_and_b32 v{T+2}, 0xffff0000, v{B1+(e>>1)}")
        A(f"v_add_f32 v{z}, v{z}, v{T+2}")
        rbf(z, z)
        A(f"v_mul_f32 v{T+2}, v{z}, v{z}")
        A(f"v_mov_b32 v{T+3}, {fl(c1)}")
        A(f"v_fmac_f32 v{T+3}, s62, v{T+2}")
        A(f"v_mul_f32 v{T+3}, v{T+3}, v{z}")
        A(f"v_exp_f32 v{T+3}, v{T+3}")
        A(f"v_add_f32 v{T+3}, 1.0, v{T+3}")
        A(f"v_rcp_f32 v{T+3}, v{T+3}")
        A(f"v_mul_f32 v{z}, v{z}, v{T+3}")
        A(f"v_cvt_pk_bf16_f32 v{z}, v{z}, v{z}")
    A("v_lshlrev_b32 v6, 4, v5")
    A(f"ds_write_b128 v6, {vr(Z,4)} offset:{L_HH2}")
    A("v_lshlrev_b32 v7, 6, v4")
    A("s_waitcnt lgkmcnt(0)")
    for i in range(4):
        A(f"ds_read_b128 {vr(VAL+4*i,4)}, v7 offset:{L_HH2+16*i}")
    sel_masks(MK, 0, T + 2, T + 3, True)
    A("s_waitcnt lgkmcnt(0)")
    if w2late:
        assert nob2
        if w2pre:
            for t in range(16):
                for r in range(4):
                    A(f"v_and_b32 v{W1+4*t+r}, v{VAL+t}, v{MK+r}")
        if warm & 8:
            A(f"s_mov_b32 s79, {OOB}")
            A("L_H1_RUN:")
            skip_if_dry("L_H1_CW_OK")
        if w2late == 2:
            wait_flag("L_H1_CW", off=24)
        else:
            wait_cnt("L_H1_CW", w2thr)
        w2_loads()
        if w2pre:
            for t in range(16):
                if t % 4 == 0:
                    A(f"s_waitcnt vmcnt({12-t})")
                d = D if (t & 1) == 0 else D2
                c = "0" if t < 2 else vr(d, 4)
                A(f"v_mfma_f32_16x16x32_bf16 {vr(d,4)}, {vr(W1+4*t,4)}, {vr(W2+4*t,4)}, {c}")
            for r in range(4):
                A(f"v_add_f32 v{D+r}, v{D+r}, v{D2+r}")
        else:
            sel_gemv(16, VAL, W2, AS, MK, D, D2, T, waits={0: 12, 4: 8, 8: 4, 12: 0})
    else:
        sel_gemv(16, VAL, W2, AS, MK, D, D2, T)
    pack_tags(D, VFF)
    if aptr & 2:
        assert mlp5
        A("s_lshl_b32 s57, s35, 14")
        A("s_lshl_b32 s60, s34, 5")
        A("s_add_u32 s57, s57, s60")
        A(f"s_add_u32 s57, s57, {BP_OFF}")
        A("v_lshlrev_b32 v8, 10, v5")
        A("v_lshl_add_u32 v8, v4, 4, v8")
    else:
        A(f"s_mul_i32 s57, s34, {NC}")
        A("s_add_u32 s57, s57, s35")
        A(f"s_mul_i32 s57, s57, {CB}")
        A(f"s_add_u32 s57, s57, {BP_OFF}")
    A(f"s_mov_b32 s60, {'0xffffffff' if mlp5 else '0x03ff03ff'}")
    A("s_mov_b32 s61, 0")
    if warm & 8:
        A("s_or_b32 s57, s57, s79")
    A("s_mov_b64 exec, s[60:61]")
    A(f"buffer_store_dwordx4 {vr(D,4)}, v8, s[36:39], s57 offen sc1")
    A("s_mov_b64 exec, -1")
    stamp(4)
    if warm & 8:
        assert w2late
        A("s_cmp_eq_u32 s79, 0")
        A("s_cbranch_scc1 L_H1_EXIT")
        A("s_mov_b32 s79, 0")
        A("s_branch L_H1_RUN")
    A("L_H1_EXIT:")
    endp()

    C("---- final consumer: 8 output columns ----")
    A("L_FIN:")
    A(f"s_cmp_ge_u32 s2, {NFIN}")
    A("s_cbranch_scc1 L_END")
    if noh or notail:
        A("s_branch L_END")
    XP = 10; B2P = 12; BV = 14
    FA = 20
    FB = 36
    FT = 40
    srd(40, 4, 5, 1280)
    srd(44, 22, 23, 1280)
    srd(48, 24, 25, 1280)
    A("s_lshl_b32 s57, s2, 4")
    A("v_and_b32 v6, 1, v0")
    A("v_lshlrev_b32 v2, 3, v6")
    A(f"buffer_load_dwordx2 {vr(XP,2)}, v2, s[40:43], s57 offen")
    A(f"buffer_load_dwordx2 {vr(B2P,2)}, v2, s[44:47], s57 offen")
    A("v_lshrrev_b32 v7, 1, v0")
    if mlp5:
        A("s_lshr_b32 s58, s2, 4")
        A("s_and_b32 s59, s2, 15")
    else:
        A("s_mul_i32 s58, s2, 6554")
        A("s_lshr_b32 s58, s58, 16")
        A("s_mul_i32 s59, s58, 10")
        A("s_sub_u32 s59, s2, s59")
    A(f"s_mul_i32 s58, s58, {CB}")
    A("s_lshl_b32 s59, s59, 5")
    A("s_add_u32 s58, s58, s59")
    A(f"s_add_u32 s58, s58, {BP_OFF}")
    A(f"v_mul_u32_u24 v3, {NC*CB}, v7")
    A("v_lshl_add_u32 v3, v6, 4, v3")
    if aptr & 2:
        A("s_lshl_b32 s58, s2, 10")
        A(f"s_add_u32 s58, s58, {BP_OFF}")
        A("v_lshlrev_b32 v3, 4, v0")
    A("s_cmp_ge_u32 s2, 40")
    A("s_cselect_b32 s60, 1, 0")
    A("s_mul_i32 s61, s60, 40")
    A("s_sub_u32 s61, s2, s61")
    A("s_lshl_b32 s61, s61, 5")
    A("s_mul_i32 s60, s60, 1280")
    A("s_add_u32 s60, s60, s61")
    A(f"s_add_u32 s60, s60, {AP_OFF}")
    for k in range(1, 4):
        A(f"s_add_u32 s{60+k}, s60, {k*32*2560}")
    A("v_mul_u32_u24 v9, 2560, v7")
    A("v_lshl_add_u32 v9, v6, 4, v9")
    if aptr & 1:
        A("s_lshl_b32 s60, s2, 12")
        A(f"s_add_u32 s60, s60, {AP_OFF}")
        for k in range(1, 4):
            A(f"s_add_u32 s{60+k}, s60, {1024*k}")
        A("v_lshlrev_b32 v9, 4, v0")
    A("s_barrier")
    get_tags()
    A("s_mov_b32 s56, 0")
    FDRY = [56, 57, 58, 60, 61, 62, 63]
    if warm & 1:
        assert nob2 and not b3
        if warmq:
            wait_flag("L_FIN_QW", vt=4)
        toggle_oob(FDRY)
        A("s_mov_b32 s79, 1")
        A(f"s_mov_b32 s80, {POLL_MAX}")
        A("L_FIN_RUN:")
    for r in range(4):
        A(f"v_mov_b32 v{FB+r}, 0")
    A("s_mov_b32 s64, -1")
    A("s_mov_b32 s65, 0x003fffff")
    stamp(4)
    if fintrig and fcomb:
        if warm & 1:
            skip_if_dry("L_FIN_TW_OK")
        wait_flag("L_FIN_TW", vt=4, off=32)
        if not nob2:
            assert 0
    elif nob2:
        if warm & 1:
            skip_if_dry("L_FIN_CW_OK")
        wait_cnt("L_FIN_CW", finthr, vt=4)
    else:
        A("s_barrier")
    stamp(0)

    def lanes_sum(regs, tmps):
        for s_ in (2, 4, 8):
            for v in regs:
                A(f"v_add_f32_dpp v{v}, v{v}, v{v} row_ror:{s_} {DPPM}")
        swap_add_n(regs, tmps, 16)
        swap_add_n(regs, tmps, 32)

    A("s_mov_b64 exec, s[64:65]")
    A("L_FIN_POLLB:")
    A(f"buffer_load_dwordx4 {vr(FB,4)}, v3, s[36:39], s58 offen sc1")
    if fcomb:
        assert not b3
        A("s_mov_b64 exec, -1")
        for k in range(4):
            A(f"buffer_load_dwordx4 {vr(FA+4*k,4)}, v9, s[36:39], s{60+k} offen sc1")
        A("s_mov_b64 exec, s[64:65]")
        A("s_waitcnt vmcnt(4)")
    else:
        A("s_waitcnt vmcnt(0)")
    strip_tags(FT, FB, True)
    A(f"v_and_b32 v{FT}, 0xff, v{FT}")
    A(f"v_cmp_ne_u32 vcc, 0, v{FT}")
    poll_branch("L_FIN_POLLB")
    A("s_mov_b64 exec, -1")
    stamp(1)
    if not b3 and not fcomb and not fintrig:
        for k in range(4):
            A(f"buffer_load_dwordx4 {vr(FA+4*k,4)}, v9, s[36:39], s{60+k} offen sc1")
    lanes_sum([FB + r for r in range(4)], [FT + r for r in range(4)])
    for e in range(4):
        rbf(FB + e, FB + e)
        if (e & 1) == 0:
            A(f"v_lshlrev_b32 v{FT}, 16, v{B2P+(e>>1)}")
        else:
            A(f"v_and_b32 v{FT}, 0xffff0000, v{B2P+(e>>1)}")
        A(f"v_add_f32 v{FB+e}, v{FB+e}, v{FT}")
        rbf(BV + e, FB + e)
    XFP = FB
    for e in range(4):
        if (e & 1) == 0:
            A(f"v_lshlrev_b32 v{XFP+e}, 16, v{XP+(e>>1)}")
        else:
            A(f"v_and_b32 v{XFP+e}, 0xffff0000, v{XP+(e>>1)}")
    if not b3:
        if fintrig and not fcomb:
            if warm & 1:
                skip_if_dry("L_FIN_TW_OK")
            wait_flag("L_FIN_TW", vt=4, off=32)
            stamp(3)
        else:
            A("s_branch L_FIN_CHK")
        A("L_FIN_POLLA:")
        for k in range(4):
            A(f"buffer_load_dwordx4 {vr(FA+4*k,4)}, v9, s[36:39], s{60+k} offen sc1")
        A("L_FIN_CHK:")
        for k in range(4):
            A(f"s_waitcnt vmcnt({3-k})")
            strip_tags(FT, FA + 4 * k, k == 0)
        A(f"v_and_b32 v{FT}, 0xff, v{FT}")
        A(f"v_cmp_ne_u32 vcc, 0, v{FT}")
        poll_branch("L_FIN_POLLA")
    else:
        MS = [66, 68, 70, 76]
        SB = 64
        for k in range(4):
            A(f"s_mov_b64 s[{MS[k]}:{MS[k]+1}], -1")
        A("s_barrier")
        stamp(3)

        def f_issue(i):
            for k in range(4):
                A(f"s_mov_b64 exec, s[{MS[k]}:{MS[k]+1}]")
                A(f"buffer_load_dwordx4 {vr(SB+16*i+4*k,4)}, v9, s[36:39], s{60+k} offen sc1")

        def f_check(i, behind):
            for k in range(4):
                src = SB + 16 * i + 4 * k
                dst = FA + 4 * k
                A(f"s_waitcnt vmcnt({behind+3-k})")
                A(f"s_mov_b64 exec, s[{MS[k]}:{MS[k]+1}]")
                for r in range(4):
                    A(f"v_xor_b32 v{dst+r}, s{72+r}, v{src+r}")
                A(f"v_or3_b32 v{FT}, v{dst}, v{dst+1}, v{dst+2}")
                A(f"v_or_b32 v{FT}, v{FT}, v{dst+3}")
                A(f"v_and_b32 v{FT}, 0xff, v{FT}")
                A(f"v_cmp_ne_u32 vcc, 0, v{FT}")
                A(f"s_mov_b64 s[{MS[k]}:{MS[k]+1}], vcc")

        A("L_FIN_SLOW:")
        f_issue(0)
        f_check(0, 0)
        A(f"s_bcnt1_i32_b64 s59, s[{MS[0]}:{MS[0]+1}]")
        for k in range(1, 4):
            A(f"s_bcnt1_i32_b64 s64, s[{MS[k]}:{MS[k]+1}]")
            A("s_add_u32 s59, s59, s64")
        A("s_cmp_eq_u32 s59, 0")
        A("s_cbranch_scc1 L_FIN_GOT")
        A("s_add_u32 s80, s80, 1")
        A(f"s_cmp_ge_u32 s80, {POLL_MAX}")
        A("s_cbranch_scc1 L_FIN_GOT")
        if fdense > 1:
            A(f"s_cmp_gt_u32 s59, {fthr}")
            A("s_cbranch_scc1 L_FIN_SLOW")
            for i in range(fdense):
                f_issue(i)
            A("L_FIN_DENSE:")
            for i in range(fdense):
                f_check(i, 4 * (fdense - 1))
                A(f"s_or_b64 s[64:65], s[{MS[0]}:{MS[0]+1}], s[{MS[1]}:{MS[1]+1}]")
                A(f"s_or_b64 s[64:65], s[64:65], s[{MS[2]}:{MS[2]+1}]")
                A(f"s_or_b64 s[64:65], s[64:65], s[{MS[3]}:{MS[3]+1}]")
                A("s_cbranch_scc0 L_FIN_GOT")
                f_issue(i)
            A("s_add_u32 s80, s80, 1")
            A(f"s_cmp_lt_u32 s80, {POLL_MAX}")
            A("s_cbranch_scc1 L_FIN_DENSE")
        else:
            A("s_branch L_FIN_SLOW")
        A("L_FIN_GOT:")
        A("s_mov_b64 exec, -1")
    stamp(2)
    for r in range(4):
        A(f"v_add_f32 v{FA+r}, v{FA+r}, v{FA+4+r}")
        A(f"v_add_f32 v{FA+8+r}, v{FA+8+r}, v{FA+12+r}")
    for r in range(4):
        A(f"v_add_f32 v{FA+r}, v{FA+r}, v{FA+8+r}")
    lanes_sum([FA + r for r in range(4)], [FT + r for r in range(4)])
    for e in range(4):
        rbf(FA + e, FA + e)
        A(f"v_add_f32 v{FA+e}, v{FA+e}, v{XFP+e}")
        rbf(FA + e, FA + e)
        A(f"v_add_f32 v{FA+e}, v{FA+e}, v{BV+e}")
    A(f"v_cvt_pk_bf16_f32 v{FA}, v{FA}, v{FA+1}")
    A(f"v_cvt_pk_bf16_f32 v{FA+1}, v{FA+2}, v{FA+3}")
    A("s_mov_b64 exec, 3")
    A(f"buffer_store_dwordx2 {vr(FA,2)}, v2, s[48:51], s57 offen")
    A("s_cmp_lg_u32 s2, 0")
    A("s_cbranch_scc1 L_FIN_DONE")
    A("s_mov_b64 exec, 1")
    A("v_mov_b32 v4, s30")
    A("v_mov_b32 v5, s31")
    A(f"v_mov_b32 v6, {R_OFF}")
    A("buffer_store_dwordx2 v[4:5], v6, s[36:39], s56 offen sc1")
    A("L_FIN_DONE:")
    stamp(5)
    if warm & 1:
        A("s_cmp_eq_u32 s79, 0")
        A("s_cbranch_scc1 L_FIN_FINI")
        toggle_oob(FDRY)
        A("s_mov_b32 s79, 0")
        A("s_mov_b32 s80, 0")
        A("s_mov_b64 exec, -1")
        A("s_branch L_FIN_RUN")
        A("L_FIN_FINI:")
    if b3 and fdense > 1:
        A("s_waitcnt vmcnt(0)")
    endp()

    C("---- H2 ----")
    A("L_H2:")
    if hprio:
        A(f"s_setprio {hprio}")
    A("s_barrier")
    if noh or h2off:
        endp()
    get_tags()
    if nob2:
        assert pool and not b3 and not notail and wolate in (0, 3)
        if not wolate:
            wait_flag("L_H2_QW")
    elif wolate < 4:
        wait_flag("L_H2_QW", off=16 if wolate else 0)
    stamp(0)
    WO = 100
    P = 16
    MK2 = 40
    AS2 = 44
    DA = 60
    GO = 80
    VFF2 = 15
    srd(40, 12, 13, 4096 * 1280)
    A("s_lshr_b32 s58, s33, 1")
    A("s_and_b32 s59, s33, 1")
    A("s_lshl_b32 s56, s32, 7")
    A("s_lshl_b32 s57, s58, 5")
    A("s_add_u32 s56, s56, s57")
    A("s_mul_i32 s56, s56, 1280")
    A("s_mul_i32 s57, s59, 640")
    A("s_add_u32 s56, s56, s57")
    A("s_add_u32 s57, s56, 2560")
    A("v_lshrrev_b32 v6, 3, v0")
    A("v_and_b32 v7, 7, v0")
    A("v_mul_u32_u24 v3, 5120, v6")
    A("v_lshl_add_u32 v3, v7, 4, v3")
    if touch & 1:
        A("v_mul_u32_u24 v98, 39680, v0")
        A("s_mov_b64 exec, 3")
        A("buffer_load_dword v99, v98, s[40:43], s56 offen")
        A("s_mov_b64 exec, -1")

    def wo_loads():
        for u in range(4):
            for v in range(5):
                so = "s56" if u < 2 else "s57"
                A(f"buffer_load_dwordx4 {vr(WO+4*(u*5+v),4)}, v3, s[40:43], {so} offen offset:{(u&1)*1280+128*v}{wp}")
    if (wolate < 4 and not nob2) or (nob2 and not wolate):
        wo_loads()
    sel_masks(MK2, 0, 8, 9, False)
    A(f"v_mov_b32 v{VFF2}, 0xff")
    A("v_and_b32 v2, 31, v0")
    A("v_lshlrev_b32 v2, 4, v2")
    A("v_mov_b32 v10, 0")
    A("s_lshl_b32 s60, s2, 9")
    A(f"s_add_u32 s60, s60, {OP_OFF}")
    A("s_lshl_b32 s61, s32, 7")
    A(f"s_add_u32 s61, s61, {ML_OFF}")
    A("s_lshl_b32 s62, s33, 4")
    A("s_add_u32 s62, s62, s61")
    A("s_lshl_b32 s63, s32, 12")
    A("s_lshl_b32 s64, s58, 7")
    A("s_add_u32 s63, s63, s64")
    A(f"s_add_u32 s63, s63, {OP_OFF}")
    A("v_lshlrev_b32 v11, 9, v7")
    A("v_lshl_add_u32 v11, v6, 4, v11")
    A("v_lshlrev_b32 v12, 4, v7")
    A("v_lshrrev_b32 v8, 3, v5")
    A("v_lshrrev_b32 v9, 1, v4")
    A("v_lshl_add_u32 v8, v8, 1, v9")
    A("v_and_b32 v9, 7, v5")
    A("v_lshlrev_b32 v13, 5, v9")
    A("v_and_b32 v9, 1, v4")
    A("v_lshl_add_u32 v13, v9, 4, v13")
    A("v_lshl_add_u32 v13, v8, 8, v13")
    A("v_lshlrev_b32 v14, 5, v5")
    A("v_lshl_add_u32 v14, v4, 4, v14")
    A("s_mul_i32 s64, s2, 1280")
    A(f"s_add_u32 s64, s64, {AP_OFF}")
    if aptr & 1:
        A("v_and_b32 v9, 7, v5")
        A("v_lshl_add_u32 v13, v8, 3, v9")
        A("v_lshlrev_b32 v13, 12, v13")
        A("v_and_b32 v9, 1, v4")
        A("v_lshl_add_u32 v13, v9, 4, v13")
        A("v_add_u32 v14, 32, v5")
        A("v_lshlrev_b32 v14, 12, v14")
        A("v_lshl_add_u32 v14, v4, 4, v14")
        A(f"s_mul_i32 s64, s59, {40*4096}")
        A("s_lshr_b32 s65, s2, 1")
        A("s_lshl_b32 s65, s65, 5")
        A("s_add_u32 s64, s64, s65")
        A(f"s_add_u32 s64, s64, {AP_OFF}")
    A("s_mov_b32 s66, 0x00ff00ff")
    A("s_mov_b32 s67, 0")
    if not wolate:
        A("s_waitcnt vmcnt(0)")
    stamp(4)
    if notail:
        endp()
    H2DRY = [56, 57, 61, 63, 64]
    if warm & 2:
        assert nob2 and wolate == 3 and not hdense
        if warmq:
            wait_flag("L_H2_QW")
        toggle_oob(H2DRY)
        A("s_mov_b32 s79, 1")
        A("s_mov_b32 s78, 0")
        A(f"s_mov_b32 s80, {POLL_MAX}")
        A("L_H2_RUN:")
        skip_if_dry("L_H2_CW_OK")
    if nob2:
        if wolate:
            wait_cnt("L_H2_CW", wothr)
            stamp(0)
            wo_loads()
        stamp(5)
        if diag:
            A("s_waitcnt vmcnt(0)")
    else:
        A("s_barrier")
        stamp(5)
        if wolate == 5:
            wo_loads()
        merge_publish()
    if wolate == 4 and not nob2:
        wo_loads()
    stamp(6)
    GI = P
    if not hdense:
        A("L_H2_POLL:")
        A(f"buffer_load_dwordx4 {vr(GI+4,4)}, v12, s[36:39], s61 offen sc1")
        A(f"buffer_load_dwordx4 {vr(GI,4)}, v11, s[36:39], s63 offen sc1")
        A("s_waitcnt vmcnt(0)")
        strip_tags(8, GI, True)
        A("v_and_b32 v8, 0xff, v8")
        tagcheck(8, GI + 4, False)
        A("v_cmp_ne_u32 vcc, 0, v8")
        poll_branch("L_H2_POLL")
    else:
        HS = 184
        A("s_mov_b64 s[68:69], -1")

        def h_issue(i):
            A(f"buffer_load_dwordx4 {vr(HS+8*i+4,4)}, v12, s[36:39], s61 offen sc1")
            A(f"buffer_load_dwordx4 {vr(HS+8*i,4)}, v11, s[36:39], s63 offen sc1")

        def h_check(i, behind):
            src = HS + 8 * i
            A(f"s_waitcnt vmcnt({behind})")
            for r in range(4):
                A(f"v_xor_b32 v{GI+r}, s{72+r}, v{src+r}")
            A(f"v_mov_b32 v{GI+4}, v{src+4}")
            A(f"v_mov_b32 v{GI+6}, v{src+6}")
            A(f"v_or3_b32 v8, v{GI}, v{GI+1}, v{GI+2}")
            A(f"v_or_b32 v8, v8, v{GI+3}")
            A("v_and_b32 v8, 0xff, v8")
            tagcheck(8, src + 4, False)
            A("v_cmp_ne_u32 vcc, 0, v8")
            A("s_mov_b64 exec, vcc")
            A("s_cbranch_vccz L_H2_GOT")

        h_issue(0)
        h_check(0, 0)
        for i in range(hdense):
            h_issue(i)
        A("L_H2_DENSE:")
        for i in range(hdense):
            h_check(i, 2 * (hdense - 1))
            h_issue(i)
        A("s_add_u32 s80, s80, 1")
        A(f"s_cmp_lt_u32 s80, {POLL_MAX}")
        A("s_cbranch_scc1 L_H2_DENSE")
        A("L_H2_GOT:")
        A("s_mov_b64 exec, -1")
    stamp(7)
    if fintrig:
        A("v_mov_b32 v2, 0")
        A("v_mov_b32 v10, s78" if warm & 2 else "v_mov_b32 v10, 1")
    if fintrig == 1:
        A(f"ds_write_b32 v2, v10 offset:{L_FLAG+32}")
    mm, ll = GI + 4, GI + 6
    A(f"v_mov_b32 v8, v{mm}")
    oct_reduce([8], "v_max_f32")
    A(f"v_sub_f32 v8, v{mm}, v8")
    A(f"v_mul_f32 v8, {fl(LOG2E)}, v8")
    A("v_exp_f32 v8, v8")
    A(f"v_mul_f32 v9, v8, v{ll}")
    for r in range(4):
        A(f"v_mul_f32 v{GI+r}, v8, v{GI+r}")
    oct_reduce([9, GI, GI + 1, GI + 2, GI + 3])
    A("v_rcp_f32 v9, v9")
    for r in range(4):
        A(f"v_mul_f32 v{GI+r}, v{GI+r}, v9")
    for r in range(4):
        A(f"v_cvt_pk_bf16_f32 v{GI+r}, v{GI+r}, v{GI+r}")
    for u in range(4):
        for r in range(4):
            A(f"v_and_b32 v{AS2+4*u+r}, v{GI+u}, v{MK2+r}")
    for u in range(4):
        for v in range(5):
            c = "0" if u == 0 else vr(DA + 4 * v, 4)
            A(f"v_mfma_f32_16x16x32_bf16 {vr(DA+4*v,4)}, {vr(AS2+4*u,4)}, {vr(WO+4*(u*5+v),4)}, {c}")
    for a in (0, 2):
        for r in range(4):
            A(f"v_permlane32_swap_b32 v{DA+4*a+r}, v{DA+4*(a+1)+r}")
    for a in (0, 2):
        for r in range(4):
            A(f"v_add_f32_dpp v{DA+4*a+r}, v{DA+4*(a+1)+r}, v{DA+4*a+r} row_ror:8 {DPPM}")
    for r in range(4):
        A(f"v_mov_b32_dpp v{DA+r}, v{DA+8+r} row_ror:8 row_mask:0xf bank_mask:0xc")
    pack_tags(DA, VFF2)
    A(f"buffer_store_dwordx4 {vr(DA,4)}, v13, s[36:39], s64 offen sc1")
    pair_sum([DA + 16 + r for r in range(4)], [DA + 4 + r for r in range(4)])
    pack_tags(DA + 16, VFF2)
    A("s_mov_b64 exec, s[66:67]")
    A(f"buffer_store_dwordx4 {vr(DA+16,4)}, v14, s[36:39], s64 offen offset:{0 if aptr & 1 else 1024} sc1")
    if fintrig == 2:
        A(f"ds_write_b32 v2, v10 offset:{L_FLAG+32}")
    if fintrig:
        A("s_waitcnt lgkmcnt(0)")
    stamp(3)
    if warm & 2:
        A("s_cmp_eq_u32 s79, 0")
        A("s_cbranch_scc1 L_H2_FINI")
        toggle_oob(H2DRY)
        A("s_mov_b32 s79, 0")
        A("s_mov_b32 s78, 1")
        A("s_mov_b32 s80, 0")
        A("s_mov_b64 exec, -1")
        A("s_branch L_H2_RUN")
        A("L_H2_FINI:")
    if b3:
        A(f"s_cmp_ge_u32 s2, {NFIN}")
        A("s_cbranch_scc1 L_H2_END")
        A("s_barrier")
        A("L_H2_END:")
    if hdense:
        A("s_waitcnt vmcnt(0)")
    endp()

    C("---- streamers ----")
    A("L_STREAM:")
    stamp(5)
    if sprio:
        A(f"s_setprio {sprio}")
    RB = 64
    SB0 = 70 if smerge else 72
    NS = NP
    AQ = 8
    MKS = 24
    DSC = 28
    DO = 32
    PA = 36
    vS, vT, vP, vP2s, vP2, vL, vM, vT2 = 44, 45, 46, 47, 48, 49, 50, 51
    vK, vV = 2, 3
    vTK, vZ, vOne = 56, 57, 58
    assert RB + 32 * NS <= 256
    A("s_lshl_b32 s56, s32, 22")
    A("s_add_u32 s40, s6, s56")
    A("s_addc_u32 s41, s7, 0")
    A(f"s_mov_b32 s42, {4<<20}")
    A("s_mov_b32 s43, 0x20000")
    A("s_add_u32 s44, s8, s56")
    A("s_addc_u32 s45, s9, 0")
    A(f"s_mov_b32 s46, {4<<20}")
    A("s_mov_b32 s47, 0x20000")
    A(f"v_lshlrev_b32 v{vK}, 8, v5")
    A(f"v_lshl_add_u32 v{vK}, v4, 4, v{vK}")
    A(f"v_lshlrev_b32 v{vV}, 4, v0")
    A(f"s_mul_i32 s{SB0}, s33, {(128 if (pmap or pfake) else NLOC)*4096}")
    A("s_sub_u32 s57, s3, 4")
    A("s_lshl_b32 s57, s57, 12")
    A(f"s_add_u32 s56, s{SB0}, s57")
    SOFF = 60

    def req_ticket():
        A("s_mov_b64 exec, 1")
        A(f"ds_add_rtn_u32 v{vTK}, v{vZ}, v{vOne} offset:{L_FLAG+8}")
        A("s_mov_b64 exec, -1")

    def slot_regs(slot):
        return RB + 32 * slot

    def loads(slot):
        b = slot_regs(slot)
        for kk in range(4):
            A(f"buffer_load_dwordx4 {vr(b+4*kk,4)}, v{vK}, s[40:43], s{SOFF+slot} offen offset:{64*kk}{kp}")
        for u in range(4):
            A(f"buffer_load_dwordx4 {vr(b+16+4*u,4)}, v{vV}, s[44:47], s{SOFF+slot} offen offset:{1024*u}{kp}")

    iu = [0]

    def issue_static(slot):
        A(f"s_mov_b32 s{SOFF+slot}, s56")
        A("s_add_u32 s56, s56, 16384")
        loads(slot)

    def issue(slot):
        A("s_waitcnt lgkmcnt(0)")
        A(f"v_readfirstlane_b32 s58, v{vTK}")
        A("s_lshl_b32 s59, s58, 12")
        A(f"s_add_u32 s59, s59, s{SB0}")
        A(f"s_cmp_lt_u32 s58, {NLOC}")
        if pool:
            iu[0] += 1
            u = iu[0]
            A(f"s_cbranch_scc1 L_TK_{u}")
            A("s_lshl_b32 s58, s58, 2")
            A(f"v_mov_b32 v{vT}, s58")
            A("s_mov_b32 s82, 0")
            A(f"L_TB_{u}:")
            A(f"ds_read_b32 v{vT2}, v{vT} offset:{L_TAB-4*NLOC}")
            A("s_waitcnt lgkmcnt(0)")
            A(f"v_readfirstlane_b32 s59, v{vT2}")
            A("s_cmp_lg_u32 s59, -1")
            A(f"s_cbranch_scc1 L_T{'D' if (wolate == 2 or w2late == 2) else 'K'}_{u}")
            if diag:
                A("s_add_u32 s79, s79, 1")
            A("s_add_u32 s82, s82, 1")
            A(f"s_cmp_lt_u32 s82, {POLL_MAX*16}")
            A(f"s_cbranch_scc1 L_TB_{u}")
            if wolate == 2 or w2late == 2:
                A(f"L_TD_{u}:")
                A(f"s_cmp_lt_u32 s59, {OOB}")
                A(f"s_cbranch_scc1 L_TK_{u}")
                A(f"ds_write_b32 v{vZ}, v{vOne} offset:{L_FLAG+(16 if wolate == 2 else 24)}")
            A(f"L_TK_{u}:")
            A(f"s_mov_b32 s{SOFF+slot}, s59")
        else:
            A(f"s_cselect_b32 s{SOFF+slot}, s59, {OOB}")
        loads(slot)
        req_ticket()

    if diag >= 2:
        A("v_mov_b32 v63, 0")
        A("s_mov_b32 m0, 0")
        A("s_mov_b32 s76, 0")
    for k in range(min(b0early, DS)):
        issue_static(k)
    stamp(7)
    A("s_barrier")
    stamp(0)
    for k in range(min(b0early, DS), min(DS, NP)):
        issue_static(k)
    A(f"v_mov_b32 v{vZ}, 0")
    A(f"v_mov_b32 v{vOne}, 1")
    if smerge:
        assert nob2 and not spec
        get_tags()
        A("s_lshl_b32 s66, s2, 9")
        A(f"s_add_u32 s66, s66, {OP_OFF}")
        A("s_lshl_b32 s67, s32, 7")
        A("s_lshl_b32 s68, s33, 4")
        A("s_add_u32 s67, s67, s68")
        A(f"s_add_u32 s67, s67, {ML_OFF}")
    sel_masks(MKS, 0, vT, vT2, True)
    A(f"v_mov_b32 v{vM}, 0xff800000")
    A(f"v_mov_b32 v{vL}, 0")
    for r in range(4):
        A(f"v_mov_b32 v{DO+r}, 0")
    A("v_lshlrev_b32 v6, 4, v4")
    A("s_mov_b32 s81, 0")
    if diag:
        A("s_mov_b32 s79, 0")
    for k in range(DS, NP):
        A("s_cmp_lg_u32 s81, 0")
        A(f"s_cbranch_scc1 L_FILL_{k}")
        A(f"s_waitcnt vmcnt({PER*(DS-1)})")
        read_flag(vT, 81)
        A(f"L_FILL_{k}:")
        issue_static(k)
    stamp(1)
    wait_flag("L_S_QW", vT, 81)
    for kk in range(4):
        A(f"ds_read_b128 {vr(AQ+4*kk,4)}, v6 offset:{L_Q+64*kk}")
    A("s_waitcnt lgkmcnt(0)")
    req_ticket()
    stamp(2)

    uid = [0]

    def step(slot, wait, issue_slot):
        uid[0] += 1
        u = uid[0]
        b = slot_regs(slot)
        A(f"s_cmp_ge_u32 s{SOFF+slot}, {OOB}")
        A("s_cbranch_scc1 L_SDONE")
        A(f"s_waitcnt vmcnt({wait})")
        if diag >= 2:
            A("s_waitcnt lgkmcnt(0)")
            A("v_writelane_b32 v63, s76, m0")
            A("s_memrealtime s[76:77]")
            A("s_add_u32 m0, m0, 1")
        if issue_slot is not None:
            issue(issue_slot)
        for kk in range(4):
            c = "0" if kk == 0 else vr(DSC, 4)
            A(f"v_mfma_f32_16x16x32_bf16 {vr(DSC,4)}, {vr(AQ+4*kk,4)}, {vr(b+4*kk,4)}, {c}")
        rbf(vT, DSC)
        A(f"v_mul_f32 v{vT}, {fl(SCALE)}, v{vT}")
        rbf(vS, vT)
        A(f"v_cmp_gt_f32 vcc, v{vS}, v{vM}")
        A(f"s_cbranch_vccz L_NORESC_{u}")
        A(f"v_max_f32_dpp v{vT}, v{vS}, v{vS} row_ror:8 {DPPM}")
        for s in (4, 2, 1):
            A(f"v_max_f32_dpp v{vT}, v{vT}, v{vT} row_ror:{s} {DPPM}")
        A(f"v_max_f32 v{vT}, v{vT}, v{vM}")
        A(f"v_sub_f32 v{vT2}, v{vM}, v{vT}")
        A(f"v_mul_f32 v{vT2}, {fl(LOG2E)}, v{vT2}")
        A(f"v_exp_f32 v{vT2}, v{vT2}")
        A(f"v_mov_b32 v{vM}, v{vT}")
        A(f"v_mul_f32 v{vL}, v{vL}, v{vT2}")
        for r in range(4):
            A(f"v_mul_f32 v{DO+r}, v{DO+r}, v{vT2}")
        A(f"L_NORESC_{u}:")
        A(f"v_sub_f32 v{vT}, v{vS}, v{vM}")
        A(f"v_mul_f32 v{vT}, {fl(LOG2E)}, v{vT}")
        A(f"v_exp_f32 v{vP}, v{vT}")
        A(f"v_cvt_pk_bf16_f32 v{vP2s}, v{vP}, v{vP}")
        A(f"v_cvt_pk_bf16_f32 v{vP2}, v{vP}, v{vP}")
        A(f"v_add_f32 v{vL}, v{vL}, v{vP}")
        A(f"v_mov_b32_dpp v{vP2}, v{vP2s} row_shl:1 row_mask:0x2 bank_mask:0xf")
        A(f"v_mov_b32_dpp v{vP2}, v{vP2s} row_shl:2 row_mask:0x4 bank_mask:0xf")
        A(f"v_mov_b32_dpp v{vP2}, v{vP2s} row_shl:3 row_mask:0x8 bank_mask:0xf")

        def ands(uu):
            a = PA + 4 * (uu & 1)
            for r in range(4):
                A(f"v_and_b32_dpp v{a+r}, v{vP2}, v{MKS+r} row_newbcast:{4*uu} {DPPM}")

        def pv(uu):
            a = PA + 4 * (uu & 1)
            A(f"v_mfma_f32_16x16x32_bf16 {vr(DO,4)}, {vr(a,4)}, {vr(b+16+4*uu,4)}, {vr(DO,4)}")
        ands(0); ands(1); pv(0); ands(2); pv(1); ands(3); pv(2); pv(3)

    RS = DIST + 1
    assert RS <= NP
    first = NP - RS
    for n in range(first):
        step(n, PER * (NP - 1 - n), None)
    step(first, PER * (RS - 1), None)
    A("L_SLOOP:")
    for i in range(RS):
        cons = first + (i + 1) % RS
        free = first + i % RS
        step(cons, PER * (DIST - 1), free)
    A("s_branch L_SLOOP")

    A("L_SDONE:")
    if eprio:
        A(f"s_setprio {eprio}")
    if wolate == 3 and not nob2:
        A(f"ds_write_b32 v{vZ}, v{vOne} offset:{L_FLAG+16}")
    stamp(3)
    if diag and pool:
        A("s_lshl_b32 s58, s2, 2")
        A("s_add_u32 s58, s58, s3")
        A("s_lshl_b32 s58, s58, 2")
        A("s_add_u32 s58, s58, 1008")
        A("v_mov_b32 v60, s58")
        A("v_mov_b32 v61, s79")
        A("s_mov_b64 exec, 1")
        A("global_store_dword v60, v61, s[26:27]")
        A("s_mov_b64 exec, -1")
    if diag >= 2:
        A("s_waitcnt vmcnt(0) lgkmcnt(0)")
        A("v_writelane_b32 v63, s76, m0")
        A("s_lshl_b32 s58, s2, 2")
        A("s_add_u32 s58, s58, s3")
        A("s_sub_u32 s58, s58, 4")
        A("s_lshl_b32 s58, s58, 8")
        A(f"s_add_u32 s58, s58, {TS2_OFF}")
        A("v_lshlrev_b32 v62, 2, v0")
        A("buffer_store_dword v63, v62, s[36:39], s58 offen")
    row_sum(vL)
    A("v_lshlrev_b32 v6, 5, v5")
    A("v_lshl_add_u32 v6, v4, 4, v6")
    A("s_sub_u32 s58, s3, 4")
    A("s_mul_i32 s58, s58, 576")
    A("v_add_u32 v6, s58, v6")
    A("v_mov_b32 v7, s58")
    A(f"v_mov_b32 v52, v{vM}")
    A(f"v_mov_b32 v53, v{vL}")
    A("s_mov_b32 exec_hi, 0")
    A(f"ds_write_b128 v6, {vr(DO,4)} offset:{L_PART}")
    A("s_mov_b64 exec, 1")
    A(f"ds_write_b64 v7, v[52:53] offset:{L_PART+512}")
    if smerge:
        A(f"ds_add_rtn_u32 v{vTK}, v{vZ}, v{vOne} offset:{L_FLAG+16}")
        A("s_mov_b64 exec, -1")
        A("v_and_b32 v2, 31, v0")
        A("v_lshlrev_b32 v2, 4, v2")
        A("v_mov_b32 v10, 0")
        A("v_mov_b32 v15, 0xff")
        A("s_waitcnt lgkmcnt(0)")
        A(f"v_readfirstlane_b32 s58, v{vTK}")
        A("s_cmp_lg_u32 s58, 3")
        A("s_cbranch_scc1 L_S_FINI")
        A("L_S_MERGE:")
        stamp(5)
        merge_publish(66, 67)
        stamp(6)
        A("L_S_FINI:")
    elif nob2:
        if not spec:
            A("s_waitcnt lgkmcnt(0)")
        A(f"ds_add_u32 v{vZ}, v{vOne} offset:{L_FLAG+16}")
        A("s_mov_b64 exec, -1")
        A("s_waitcnt lgkmcnt(0)")
    else:
        A("s_mov_b64 exec, -1")
        A("s_waitcnt lgkmcnt(0)")
        A("s_barrier")
    stamp(4)
    flush_stamps()
    A("L_END:")
    A("s_endpgm")

    L = [x for x in L if x is not None]
    out, nins = hz.fix(L)
    out.append('.section .rodata,"a"')
    out.append(".p2align 6")
    out.append(f".amdhsa_kernel {NAME}")
    out.append("  .amdhsa_next_free_vgpr 256")
    out.append("  .amdhsa_next_free_sgpr 102")
    out.append("  .amdhsa_accum_offset 256")
    out.append("  .amdhsa_group_segment_fixed_size 0")
    out.append("  .amdhsa_kernarg_size 104")
    out.append("  .amdhsa_user_sgpr_count 2")
    out.append("  .amdhsa_user_sgpr_kernarg_segment_ptr 1")
    out.append("  .amdhsa_system_sgpr_workgroup_id_x 1")
    out.append(".end_amdhsa_kernel")
    return "\n".join(out) + "\n"


def parse_spec(spec):
    kw = {}
    if spec:
        for it in spec.split(","):
            k, v = it.split("=")
            try:
                v = int(v)
            except ValueError:
                v = v.replace("+", " ")
            kw[k] = v
    return kw


if __name__ == "__main__":
    spec = sys.argv[1] if len(sys.argv) > 1 else ""
    sys.stdout.write(gen(**parse_spec(spec)))
```
